```python
import torch

def _softmax(x, axis=-1):
    return torch.softmax(x, dim=axis)
def _gelu(x):
    return torch.nn.functional.gelu(x, approximate="tanh")
def _silu(x):
    return torch.nn.functional.silu(x)
def _sigmoid(x):
    return torch.sigmoid(x)
def _layernorm(x, axis=-1, eps=1e-5):
    m = x.mean(dim=axis, keepdim=True)
    v = x.var(dim=axis, keepdim=True, unbiased=False)
    return (x - m) / torch.sqrt(v + eps)
def _scatter_add(tgt, idx, src, axis=0):
    return tgt.clone().index_add_(axis, idx, src)
def _segment_sum(src, seg, n):
    out = torch.zeros((n,) + src.shape[1:], dtype=src.dtype)
    return out.index_add_(0, seg, src)
def _pad(x, pw):
    flat = tuple(v for pair in reversed(pw) for v in pair)
    return torch.nn.functional.pad(x, flat)

kernel_name = 'standalone__sequential_behavior_din__recsys'

def setup_inputs():

    _w = (lambda a: (lambda t: t.to(torch.bfloat16) if t.is_floating_point() else t)(torch.as_tensor(a)))
    B, L, D = 4096, 20, 128
    H = D
    return {
        "target": _w((lambda *s: torch.randn(*s, dtype=torch.bfloat16) * 1.6)(B, D)),
        "hist": _w((lambda *s: torch.randn(*s, dtype=torch.bfloat16) * 1.6)(B, L, D)),
        "mask": _w((lambda lo, hi, *s: torch.randint(lo, hi, s))(0, 2, B, L).to(float)),
        "w1": _w((lambda *s: torch.randn(*s, dtype=torch.bfloat16) * 1.6)(4 * D, H) * (4 * D) ** -0.5),
        "b1": _w((lambda *s: torch.randn(*s, dtype=torch.bfloat16) * 6.4)(H) * 0.1),
        "w2": _w((lambda *s: torch.randn(*s, dtype=torch.bfloat16) * 0.05)(H, 1) * H ** -0.5),
        "b2": _w((lambda *s: torch.randn(*s, dtype=torch.bfloat16) * 0.2)(1) * 0.1),
    }

def reference(target, hist, mask, w1, b1, w2, b2):
    L = hist.shape[1]
    tgt = (lambda x, n, axis: torch.repeat_interleave(x, n, dim=axis))(target[:, None, :], L, axis=1)
    feat = torch.concatenate([hist, tgt, hist - tgt, hist * tgt], axis=-1)
    h = _sigmoid(feat @ w1 + b1)
    scores = (h @ w2 + b2)[..., 0] * mask
    return torch.einsum('bl,bld->bd', scores, hist)
```

```python
class Asm:
    def __init__(self):
        self.lines = []
    def __call__(self, s=""):
        for ln in s.strip("\n").split("\n"):
            ln = ln.strip()
            if not ln:
                continue
            if ln.endswith(":") or ln.startswith("."):
                self.lines.append(ln)
            else:
                self.lines.append("    " + ln)
    def c(self, s):
        self.lines.append("    ; " + s)
    def text(self):
        return "\n".join(self.lines) + "\n"

class Regs:
    def __init__(self, start=1, limit=256):
        self.n = start
        self.limit = limit
        self.hi = start
    def alloc(self, k=1, align=None):
        if align is None:
            align = 2 if k > 1 else 1
        self.n = (self.n + align - 1) // align * align
        r = self.n
        self.n += k
        assert self.n <= self.limit, f"out of VGPRs ({self.n})"
        self.hi = max(self.hi, self.n)
        return r

def vr(b, k=1):
    return f"v{b}" if k == 1 else f"v[{b}:{b+k-1}]"
def sr(b, k=1):
    return f"s{b}" if k == 1 else f"s[{b}:{b+k-1}]"
```

```python
import sys, struct
from asmlib import Asm, Regs, vr, sr

NAME = "standalone__sequential_behavior_din__recsys"
STAMP = "--stamp" in sys.argv

def f2u(x):
    return struct.unpack("<I", struct.pack("<f", x))[0]
CSC = f2u(-1.4426950408889634)

RS = 528
TILE = 32 * RS
RING = 0
STG = 3 * TILE
TP = STG + 5 * 16384
TRAW = TP + 8192
TAB = TRAW + 16 * 272
SM = TAB + 4 * 1280
SS = 672
NTW = SM + 12288
LDS = 163840
assert NTW + 4 <= LDS

a = Asm()
hdr = open("cdna_kernels/" + NAME + ".s.ref").read().split("; Override launch")[0]
a.lines.append(hdr.rstrip("\n"))
a.lines.append(f"; @launch grid=(256,1,1) block=(512,1,1) lds={LDS}")
a(f'''
.amdgcn_target "amdgcn-amd-amdhsa--gfx950"
.text
.globl {NAME}_kernel
.p2align 12
.fill 832, 4, 0xbf800000
.p2align 8
.type {NAME}_kernel,@function
{NAME}_kernel:
''')

nstamp = [0]
def stamp(k):
    if STAMP:
        a(f"s_memrealtime s[{70+2*k}:{71+2*k}]")
def stamp_out(vt, vt2):
    if not STAMP:
        return
    a(f'''
    s_load_dwordx2 s[68:69], s[0:1], 72
    s_waitcnt lgkmcnt(0)
    s_lshl_b32 s66, s2, 3
    s_add_u32 s66, s66, s3
    s_lshl_b32 s66, s66, 6
    v_mov_b32 {vr(vt)}, s66
    s_mov_b64 exec, 1
    ''')
    for k in range(14):
        a(f"v_mov_b32 {vr(vt2)}, s{70+2*k}\nglobal_store_dword {vr(vt)}, {vr(vt2)}, s[68:69] offset:{4*k}")
    a("s_waitcnt vmcnt(0)")

if STAMP:
    for k in range(1, 14):
        a(f"s_mov_b32 s{70+2*k}, 0")
stamp(0)
a('''
s_cmp_ge_u32 s2, 256
s_cbranch_scc1 L_exit
s_load_dwordx4 s[4:7], s[0:1], 0
s_load_dwordx2 s[8:9], s[0:1], 16
s_load_dwordx2 s[20:21], s[0:1], 24
s_load_dwordx8 s[12:19], s[0:1], 32
v_readfirstlane_b32 s3, v0
v_and_b32 v0, 63, v0
s_lshr_b32 s3, s3, 6
s_cmp_lt_u32 s3, 4
s_cbranch_scc1 L_producer
''')

R = Regs(1)
vW = [R.alloc() for _ in range(4)]
vTRW = R.alloc(); vTRW4 = R.alloc()
vT0 = R.alloc(); vT1 = R.alloc(); vT2 = R.alloc()
vFB0 = R.alloc(); vFB = R.alloc(); vEA = R.alloc(); vPA = R.alloc(); vTA = R.alloc(); vTC = R.alloc(); vEnt = R.alloc()
vTw = R.alloc()
WAC = R.alloc(32, 4); WD = R.alloc(32, 4)
X = R.alloc(16, 4); Y = R.alloc(16, 4); TR = R.alloc(16, 4)
F = R.alloc(32, 4)
EE = R.alloc(8, 4); SG = R.alloc(8, 4); W2A = R.alloc(8, 4); D2 = R.alloc(4, 4)
RA = R.alloc(16, 4); TF = R.alloc(32, 4); BA = R.alloc(4, 4); BB = R.alloc(4, 4)
RC = F
cons_hi = R.hi
sC = 24
sK10, sK01 = 26, 27
sM0, sNT, sRing, sOff = 28, 29, 30, 31
sW2 = 32

a.c("consumer: address setup")
a(f'''
s_sub_u32 s33, s3, 4
s_mov_b32 s22, 131072
s_mov_b32 s23, 0x20000
v_lshrrev_b32 {vr(vT0)}, 2, v0
v_and_b32 {vr(vT1)}, 3, v0
v_lshlrev_b32 {vr(vT1)}, 4, {vr(vT1)}
v_lshl_add_u32 {vr(vT0)}, {vr(vT0)}, 8, {vr(vT1)}
s_lshl_b32 s34, s33, 6
v_add_u32 {vr(vW[0])}, s34, {vr(vT0)}
v_add_u32 {vr(vW[1])}, {65536-1024}, {vr(vW[0])}
v_add_u32 {vr(vW[2])}, {4096-2048}, {vr(vW[0])}
v_add_u32 {vr(vW[3])}, {69632-3072}, {vr(vW[0])}
s_lshl_b32 {sr(sM0)}, s33, 12
s_add_u32 {sr(sM0)}, {sr(sM0)}, {STG}
v_and_b32 {vr(vT2)}, 31, v0
v_lshl_add_u32 {vr(vT2)}, {vr(vT2)}, 1, s34
s_mov_b32 m0, {sr(sM0)}
s_waitcnt lgkmcnt(0)
''')
stamp(1)
def dma_group(g, set_m0=True):
    gam = g % 5
    so = (g & 3) * 8192 + (g >> 2) * 32768
    if set_m0:
        a(f"s_add_u32 m0, {sr(sM0)}, {gam*16384}")
    if so:
        a(f"s_mov_b32 {sr(sOff)}, {so}")
    for j in range(4):
        a(f"buffer_load_dwordx4 {vr(vW[j])}, s[20:23], {sr(sOff) if so else 0} offen offset:{1024*j} lds")
dma_group(0, set_m0=False)
a(f'''
s_add_u32 s14, s14, s34
s_addc_u32 s15, s15, 0
s_load_dwordx16 {sr(sW2,16)}, s[14:15], 0
''')
dma_group(1)
a(f"global_load_ushort {vr(BA)}, {vr(vT2)}, s[12:13]")
for g in range(2, 5):
    dma_group(g)
a.c("remaining lane constants")
a(f'''
s_mov_b32 {sr(sC)}, {CSC:#x}
s_mov_b32 {sr(sC+1)}, {CSC:#x}
s_mov_b32 {sr(sK10)}, 0x00003f80
s_mov_b32 {sr(sK01)}, 0x3f800000
v_lshrrev_b32 {vr(vT0)}, 5, v0
v_bfe_u32 {vr(vT1)}, v0, 2, 2
v_lshlrev_b32 {vr(vT1)}, 6, {vr(vT1)}
v_lshl_add_u32 {vr(vTRW)}, {vr(vT0)}, 9, {vr(vT1)}
v_bfe_u32 {vr(vT1)}, v0, 4, 1
v_lshl_add_u32 {vr(vTRW)}, {vr(vT1)}, 5, {vr(vTRW)}
v_and_b32 {vr(vT1)}, 3, v0
v_lshl_add_u32 {vr(vTRW)}, {vr(vT1)}, 3, {vr(vTRW)}
v_add_u32 {vr(vTRW)}, {sr(sM0)}, {vr(vTRW)}
v_add_u32 {vr(vTRW4)}, 0x10000, {vr(vTRW)}
v_and_b32 {vr(vT1)}, 31, v0
v_mul_u32_u24 {vr(vFB0)}, {RS}, {vr(vT1)}
v_lshl_add_u32 {vr(vFB0)}, {vr(vT0)}, 4, {vr(vFB0)}
v_lshlrev_b32 {vr(vEA)}, 2, {vr(vT1)}
s_add_u32 s49, {sr(sM0)}, {65536+2048}
v_add_u32 {vr(vPA)}, s49, {vr(vEA)}
v_add_u32 {vr(vEA)}, {TAB}, {vr(vEA)}
s_add_u32 s49, {sr(sM0)}, 65536
v_lshl_add_u32 {vr(vTC)}, {vr(vT0)}, 8, s49
v_and_b32 {vr(vT1)}, 15, v0
v_lshl_add_u32 {vr(vTw)}, {vr(vT1)}, 4, {vr(vTC)}
v_mul_u32_u24 {vr(vT2)}, 272, {vr(vT1)}
v_lshl_add_u32 {vr(vT2)}, {vr(vT0)}, 4, {vr(vT2)}
v_add_u32 {vr(vT2)}, {TRAW}, {vr(vT2)}
''')
for i in range(1, 4):
    a(f"v_mov_b32 {vr(BA+i)}, 0\nv_mov_b32 {vr(BB+i)}, 0")
a(f"v_mov_b32 {vr(BB)}, 0")
for i in range(8):
    a(f"v_mov_b32 {vr(W2A+i)}, 0")
a.c("layer-2 A operand: rows m with (m>>2)&1 == kq&1 carry w2, other lanes stay zero")
a(f'''
s_waitcnt lgkmcnt(0)
s_mov_b32 exec_lo, -1
s_mov_b32 exec_hi, 0
v_mov_b32 {vr(BB)}, 0x3f80
s_mov_b32 exec_lo, 0xf0f00f0f
''')
for j in range(2):
    for q in range(4):
        a(f"v_mov_b32 {vr(W2A+4*j+q)}, s{sW2 + 8*j + 4*(q>>1) + (q&1)}")
a("s_mov_b32 exec_lo, 0\ns_mov_b32 exec_hi, 0xf0f00f0f")
for j in range(2):
    for q in range(4):
        a(f"v_mov_b32 {vr(W2A+4*j+q)}, s{sW2 + 8*j + 4*(q>>1) + 2 + (q&1)}")
a("s_mov_b64 exec, -1")

def tr_group(g):
    gam = g % 5
    base, off = (vTRW4, 0) if gam == 4 else (vTRW, gam * 16384)
    for j in range(4):
        s = 2 * (g & 3) + (j >> 1)
        if j & 1:
            dst = (RC if g < 4 else WD) + 4 * s
        else:
            dst = RA + 8 * (g & 1) + 4 * (j >> 1)
        for jj in range(2):
            a(f"ds_read_b64_tr_b16 {vr(dst+2*jj,2)}, {vr(base)} offset:{off + 1024*j + 256*jj}")
def combine(g):
    for h in range(2):
        s = 2 * g + h
        ra = RA + 8 * (g & 1) + 4 * h
        rc = RC + 4 * s
        for q in range(4):
            a(f"v_lshlrev_b32 {vr(EE+2*q)}, 16, {vr(ra+q)}\nv_and_b32 {vr(EE+2*q+1)}, 0xffff0000, {vr(ra+q)}")
        for q in range(4):
            a(f"v_dot2_f32_bf16 {vr(EE+2*q)}, {vr(rc+q)}, {sr(sK10)}, {vr(EE+2*q)}")
            a(f"v_dot2_f32_bf16 {vr(EE+2*q+1)}, {vr(rc+q)}, {sr(sK01)}, {vr(EE+2*q+1)}")
        for q in range(4):
            a(f"v_pk_mul_f32 {vr(EE+2*q,2)}, {vr(EE+2*q,2)}, {sr(sC,2)}")
        for q in range(4):
            a(f"v_cvt_pk_bf16_f32 {vr(WAC+4*s+q)}, {vr(EE+2*q)}, {vr(EE+2*q+1)}")
def mf32(d, A, B, C):
    a(f"v_mfma_f32_32x32x16_bf16 {vr(d,16)}, {vr(A,4)}, {vr(B,4)}, {C if isinstance(C,str) else vr(C,16)}")

a.c("weight groups 0..3: (Wa,Wc) pairs; 4..7: (Wb,Wd) pairs")
a("s_waitcnt vmcnt(17)")
stamp(2)
tr_group(0)
a("s_waitcnt lgkmcnt(0)")
dma_group(5)
a("s_waitcnt vmcnt(17)")
tr_group(1)
combine(0)
a("s_waitcnt lgkmcnt(0)")
dma_group(6)
a("s_barrier")
a("s_waitcnt vmcnt(16)")
tr_group(2)
combine(1)
a("s_waitcnt lgkmcnt(0)")
dma_group(7)
a("s_waitcnt vmcnt(16)")
tr_group(3)
for s in range(8):
    if s == 7:
        a("s_waitcnt lgkmcnt(14)")
    a(f"ds_read_b128 {vr(TF+4*s,4)}, {vr(vT2)} offset:{32*s}")
combine(2)
a("s_waitcnt vmcnt(12) lgkmcnt(0)")
stamp(3)
tr_group(4)
a(f"v_mov_b32 {vr(vT0)}, {NTW}")
a(f"ds_read_b32 {vr(vT1)}, {vr(vT0)}")
a(f"ds_read_b32 {vr(vEnt)}, {vr(vEA)}")
combine(3)
mf32(X, BA, BB, "0")
mf32(Y, RC, TF, "0")
mf32(Y, RC + 4, TF + 4, Y)
for g in range(5, 9):
    if g < 8:
        a(f"s_waitcnt vmcnt({4*(7-g)}) lgkmcnt(0)")
        tr_group(g)
    else:
        a("s_waitcnt lgkmcnt(0)")
        stamp(4)
    for h in range(2):
        s = 2 * (g - 5) + h
        mf32(X, RA + 8 * ((g - 1) & 1) + 4 * h, TF + 4 * s, X)
    if g < 8:
        for h in range(2):
            s = 2 * (g - 4) + h
            mf32(Y, RC + 4 * s, TF + 4 * s, Y)
a(f'''
v_readfirstlane_b32 {sr(sNT)}, {vr(vT1)}
v_and_b32 {vr(vTA)}, 15, {vr(vEnt)}
v_lshl_add_u32 {vr(vTA)}, {vr(vTA)}, 4, {vr(vTC)}
ds_read_b32 {vr(vEnt)}, {vr(vEA)} offset:128
s_barrier
''')
stamp(5)
NF = 7
for s in range(NF):
    a(f"ds_read_b128 {vr(F+4*s,4)}, {vr(vFB0)} offset:{32*s}")
a("s_nop 1")
for q in range(8):
    a(f"v_pk_add_f32 {vr(X+2*q,2)}, {vr(X+2*q,2)}, {vr(Y+2*q,2)} neg_lo:[0,1] neg_hi:[0,1]")
for q in range(8):
    a(f"v_pk_mul_f32 {vr(X+2*q,2)}, {vr(X+2*q,2)}, {sr(sC,2)}")
a("s_waitcnt lgkmcnt(0)")
for q in range(4):
    a(f"ds_write_b128 {vr(vTw)}, {vr(X+4*q,4)} offset:{512*q}")
for q in range(4):
    a(f"ds_read_b128 {vr(TR+4*q,4)}, {vr(vTA)} offset:{512*q}")
a(f'''
v_mov_b32 {vr(vFB)}, {vr(vFB0)}
s_mov_b32 {sr(sRing)}, 0
s_waitcnt lgkmcnt(0)
''')
stamp(6)

def sig_ops():
    ops = []
    e = lambda j: EE + (j & 7)
    for t in range(16 + 5):
        if t < 16:
            ops.append((f"v_exp_f32 {vr(e(t))}, {vr(Y+t)}", 8, "E"))
        j = t - 1
        if 0 <= j < 16:
            ops.append((f"v_add_f32 {vr(e(j))}, 1.0, {vr(e(j))}", 4, "A"))
        j = t - 3
        if 0 <= j < 16:
            ops.append((f"v_rcp_f32 {vr(e(j))}, {vr(e(j))}", 8, "R"))
        j = t - 5
        if 0 <= j < 16 and j & 1:
            ops.append((f"v_cvt_pk_bf16_f32 {vr(SG+(j>>1))}, {vr(e(j-1))}, {vr(e(j))}", 4, f"C{j>>1}"))
    return ops
L0 = f"v_mfma_f32_16x16x32_bf16 {vr(D2,4)}, {vr(W2A,4)}, {vr(SG,4)}, 0"
L1 = f"v_mfma_f32_16x16x32_bf16 {vr(D2,4)}, {vr(W2A+4,4)}, {vr(SG+4,4)}, {vr(D2,4)}"
PW = f"ds_write_b32 {vr(vPA)}, {vr(D2)}"

def split_sig():
    ops = sig_ops()
    lastE = max(i for i, o in enumerate(ops) if o[2] == "E")
    head, tail = ops[:lastE+1], ops[lastE+1:]
    slots = {s: [] for s in range(16)}
    tot = sum(o[1] for o in head)
    acc = 0
    for o in head:
        s = 2 + min(12, int(acc * 13 / tot))
        slots[s].append(o); acc += o[1]
    tot = sum(o[1] for o in tail); acc = 0
    for o in tail:
        s = [15, 0, 1][min(2, int(acc * 3 / tot))]
        slots[s].append(o); acc += o[1]
    return slots

def body(first):
    slots = split_sig()
    q = getattr(body, "queue")
    def lds(text, tag):
        a(text); q.append(tag)
    def need(tags):
        idx = [i for i, t in enumerate(q) if t in tags]
        if idx:
            n = len(q) - 1 - max(idx)
            a(f"s_waitcnt lgkmcnt({n})")
            del q[:max(idx)+1]
    pendL0 = None
    for s in range(16):
        if s % 2 == 0:
            tags = {f"f{s}", f"f{s+1}"}
            if s == 0:
                tags |= {"T0", "T1", "T2", "T3"}
            if s == 2:
                tags |= {"ent"}
            need(tags)
        A = (WAC + 4 * s) if s < 8 else (WD + 4 * (s - 8))
        mf32(Y if s == 15 else X, A, F + 4 * (s & 7), TR if s == 0 else X)
        n = s + NF
        if n == 16:
            if not first:
                a("s_barrier")
        nn = n & 15
        lds(f"ds_read_b128 {vr(F+4*(n&7),4)}, {vr(vFB)} offset:{32*nn}", f"f{nn}")
        if s == 8:
            a(f'''
            s_add_u32 {sr(sRing)}, {sr(sRing)}, {TILE}
            s_cmp_eq_u32 {sr(sRing)}, {3*TILE}
            s_cselect_b32 {sr(sRing)}, 0, {sr(sRing)}
            v_add_u32 {vr(vFB)}, {sr(sRing)}, {vr(vFB0)}
            ''')
        if s == 2:
            a(f"v_and_b32 {vr(vTA)}, 15, {vr(vEnt)}\nv_lshl_add_u32 {vr(vTA)}, {vr(vTA)}, 4, {vr(vTC)}")
            a(f"v_add_u32 {vr(vEA)}, 128, {vr(vEA)}")
        if s in (3, 5, 7, 9):
            t = (s - 3) // 2
            lds(f"ds_read_b128 {vr(TR+4*t,4)}, {vr(vTA)} offset:{512*t}", f"T{t}")
        if s == 11:
            lds(f"ds_read_b32 {vr(vEnt)}, {vr(vEA)} offset:128", "ent")
        if not first:
            if s == 2:
                a(L1)
            if s == 5:
                lds(PW, "pw")
            if s == 6:
                a(f"v_add_u32 {vr(vPA)}, 128, {vr(vPA)}")
            if pendL0 == s:
                a(L0)
            for o in slots[s]:
                a(o[0])
                if o[2] == "C3":
                    pendL0 = s + 1
    return list(q)

a.c("tile 0 chain")
body.queue = []
q0 = body(True)
a(f"s_sub_u32 {sr(sNT)}, {sr(sNT)}, 1")
stamp(7)
a(".p2align 3\nL_cloop:")
body.queue = list(q0)
q1 = body(False)
assert q0 == q1, (q0, q1)
a(f'''
s_sub_u32 {sr(sNT)}, {sr(sNT)}, 1
s_cmp_lg_u32 {sr(sNT)}, 0
s_cbranch_scc1 L_cloop
''')
stamp(8)
a.c("drain: finish tile nt-2, then sigmoid of tile nt-1")
slots = split_sig()
for s in (0, 1):
    for o in slots[s]:
        a(o[0])
a("s_nop 1")
a(L1)
a("s_nop 3")
ops = sig_ops()
cnt = 0
for i, o in enumerate(ops):
    if o[2] == "A" and ops[i-1][2] == "E" and ops[i-1][0].split()[1] == o[0].split()[1]:
        a("s_nop 0")
    if o[2].startswith("C") and ops[i-1][2] == "R":
        prev_dst = ops[i-1][0].split()[1].rstrip(",")
        if prev_dst in o[0].replace(",", " ").split()[2:]:
            a("s_nop 0")
    a(o[0])
    cnt += 1
    if cnt == 8:
        a(PW)
    if i >= 2 and ops[i-2][2] == "C3":
        a(L0)
a(f'''
s_nop 1
{L1}
s_nop 7
ds_write_b32 {vr(vPA)}, {vr(D2)} offset:128
s_waitcnt lgkmcnt(0)
s_barrier
''')
stamp(9)
stamp_out(vT0, vT1)
a("L_exit:\ns_endpgm")

a(".p2align 12\nL_producer:")
R = Regs(1)
pE = R.alloc(5, 1); pM = R.alloc(5, 1)
pT0 = R.alloc(); pT1 = R.alloc(); pT2 = R.alloc(); pCh = R.alloc(); pChT = R.alloc()
pWr = R.alloc(); pTr = R.alloc(); pSr = R.alloc(); pTab = R.alloc(); pO = R.alloc(2, 2)
pEnt = R.alloc(20, 2)
H = R.alloc(80, 4)
TT = R.alloc(16, 4); PP = R.alloc(8, 4); TM = R.alloc(4, 4)
SB = R.alloc(24, 4); O0 = R.alloc(4, 4); O1 = R.alloc(4, 4)
pFE = R.alloc(); pFA = R.alloc(); pFS = R.alloc(); pOut = R.alloc()
prod_hi = R.hi
sTab, sN, sMk, sB2 = 28, 30, 31, 33
a(f'''
s_mul_i32 s24, s2, 640
v_lshl_add_u32 {vr(pT0)}, v0, 1, s24
s_lshl_b32 s25, s2, 12
s_lshl_b32 s26, s3, 10
s_add_u32 s25, s25, s26
v_lshl_add_u32 {vr(pT1)}, v0, 4, s25
s_mul_i32 {sr(sTab)}, s3, 1280
s_add_u32 {sr(sTab)}, {sr(sTab)}, {TAB}
s_waitcnt lgkmcnt(0)
''')
stamp(1)
for g in range(5):
    a(f"global_load_ushort {vr(pM+g)}, {vr(pT0)}, s[8:9] offset:{128*g}")
a(f"global_load_dwordx4 {vr(PP,4)}, {vr(pT1)}, s[4:5]")
a(f"s_load_dword {sr(sB2)}, s[16:17], 0")
a.c("pad entries, zeroed score matrix, per-row metadata")
a(f'''
v_mov_b32 {vr(TM)}, 0x1ff0
v_mov_b32 {vr(TM+1)}, 0x1ff0
v_mov_b32 {vr(TM+2)}, 0x1ff0
v_mov_b32 {vr(TM+3)}, 0x1ff0
v_lshl_add_u32 {vr(pT2)}, v0, 4, {sr(sTab)}
v_lshl_add_u32 {vr(pTab)}, v0, 2, {sr(sTab)}
ds_write_b128 {vr(pT2)}, {vr(TM,4)}
ds_write_b32 {vr(pTab)}, {vr(TM)} offset:1024
s_mul_i32 s26, s3, 3072
s_add_u32 s26, s26, {SM}
v_lshl_add_u32 {vr(pT2)}, v0, 4, s26
''')
for i in range(4):
    a(f"v_mov_b32 {vr(O0+i)}, 0")
for i in range(3):
    a(f"ds_write_b128 {vr(pT2)}, {vr(O0,4)} offset:{1024*i}")
for g in range(5):
    a(f'''
    v_add_u32 {vr(pT0)}, {64*g}, v0
    v_mul_u32_u24 {vr(pT1)}, 3277, {vr(pT0)}
    v_lshrrev_b32 {vr(pT1)}, 16, {vr(pT1)}
    v_lshl_add_u32 {vr(pE+g)}, {vr(pT0)}, 4, {vr(pT1)}
    ''')
a(f'''
s_mul_i32 s24, s2, 81920
s_add_u32 s36, s6, s24
s_addc_u32 s37, s7, 0
s_mov_b32 s38, 81920
s_mov_b32 s39, 0x20000
s_mov_b32 {sr(sMk)}, 0xfff0
v_and_b32 {vr(pCh)}, 15, v0
v_lshrrev_b32 {vr(pT0)}, 4, v0
v_lshlrev_b32 {vr(pChT)}, 4, {vr(pCh)}
s_mul_i32 s24, s3, {8*RS}
v_mul_u32_u24 {vr(pWr)}, {2*RS}, {vr(pT0)}
v_add3_u32 {vr(pWr)}, {vr(pWr)}, {vr(pChT)}, s24
s_lshl_b32 s24, s3, 5
s_add_u32 s24, s24, {sr(sTab)}
v_lshl_add_u32 {vr(pT2)}, {vr(pT0)}, 3, s24
s_mov_b32 {sr(sN)}, 0
s_lshr_b32 s27, {sr(sTab)}, 2
''')
a.c("compaction: slot = rank of the row among nonzero mask entries")
for g in range(5):
    a(f"s_waitcnt vmcnt({5-g})")
    if g == 0:
        stamp(2)
    a(f'''
    v_cmp_ne_u32 vcc, 0, {vr(pM+g)}
    v_lshl_or_b32 {vr(pE+g)}, {vr(pM+g)}, 16, {vr(pE+g)}
    v_mov_b32 {vr(pT0)}, s27
    v_mbcnt_lo_u32_b32 {vr(pT0)}, vcc_lo, {vr(pT0)}
    v_mbcnt_hi_u32_b32 {vr(pT0)}, vcc_hi, {vr(pT0)}
    s_bcnt1_i32_b64 s24, vcc
    v_lshlrev_b32 {vr(pT0)}, 2, {vr(pT0)}
    s_mov_b64 exec, vcc
    s_add_u32 s27, s27, s24
    ds_write_b32 {vr(pT0)}, {vr(pE+g)}
    s_mov_b64 exec, -1
    ''')
for k in range(6):
    a(f"ds_read_b64 {vr(pEnt+2*k,2)}, {vr(pT2)} offset:{128*k}")
a(f'''
s_lshr_b32 s24, {sr(sTab)}, 2
s_sub_u32 {sr(sN)}, s27, s24
s_add_u32 {sr(sN)}, {sr(sN)}, 31
s_lshr_b32 {sr(sN)}, {sr(sN)}, 5
s_max_u32 {sr(sN)}, {sr(sN)}, 2
v_add_u32 {vr(pChT)}, {TP}, {vr(pChT)}
s_waitcnt lgkmcnt(0)
''')
def issue(k):
    for j in range(2):
        e = pEnt + 2 * k + j
        a(f'''
        v_and_or_b32 {vr(pO+j)}, {vr(e)}, {sr(sMk)}, {vr(pCh)}
        v_lshlrev_b32 {vr(pO+j)}, 4, {vr(pO+j)}
        buffer_load_dwordx4 {vr(H+8*k+4*j,4)}, {vr(pO+j)}, s[36:39], 0 offen
        ''')
def taddr(k):
    for j in range(2):
        e = pEnt + 2 * k + j
        a(f"v_and_b32 {vr(e)}, 15, {vr(e)}\nv_lshl_add_u32 {vr(e)}, {vr(e)}, 8, {vr(pChT)}")
def tread(k):
    for j in range(2):
        e = pEnt + 2 * k + j
        a(f"ds_read_b128 {vr(TT+8*j,4)}, {vr(e)}\nds_read_b128 {vr(TT+8*j+4,4)}, {vr(e)} offset:4096")
def produce(k, pk, extra_lds=0):
    sl = (k % 3) * TILE
    for j in range(2):
        h = H + 8 * k + 4 * j
        a(f"ds_write_b128 {vr(pWr)}, {vr(h,4)} offset:{sl + RS*j}")
    for j in range(2):
        h = H + 8 * k + 4 * j
        a(f"s_waitcnt lgkmcnt({4 if j == 0 else 3})")
        for q in range(4):
            t = TM + 2 * (q & 1)
            a(f"v_lshlrev_b32 {vr(t)}, 16, {vr(h+q)}\nv_and_b32 {vr(t+1)}, 0xffff0000, {vr(h+q)}")
            if pk:
                a(f"v_pk_mul_f32 {vr(t,2)}, {vr(t,2)}, {vr(TT+8*j+2*q,2)}")
            else:
                a(f"v_mul_f32 {vr(t)}, {vr(t)}, {vr(TT+8*j+2*q)}\nv_mul_f32 {vr(t+1)}, {vr(t+1)}, {vr(TT+8*j+2*q+1)}")
            a(f"v_cvt_pk_bf16_f32 {vr(PP+4*j+q)}, {vr(t)}, {vr(t+1)}")
        a(f"ds_write_b128 {vr(pWr)}, {vr(PP+4*j,4)} offset:{sl + RS*j + 256}")
def trread(k):
    sl = (k % 3) * TILE
    for mt in range(2):
        for jj in range(2):
            a(f"ds_read_b64_tr_b16 {vr(H+8*k+4*mt+2*jj,2)}, {vr(pTr)} offset:{sl + jj*4*RS + mt*8}")

issue(0); issue(1)
stamp(3)
a.c("target tables: raw bf16 rows and fp32 rows scaled by -log2(e)")
a(f'''
v_lshrrev_b32 {vr(pT0)}, 4, v0
s_lshl_b32 s24, s3, 2
v_add_u32 {vr(pT0)}, s24, {vr(pT0)}
v_lshl_add_u32 {vr(pT1)}, {vr(pT0)}, 8, {vr(pChT)}
v_mul_u32_u24 {vr(pT0)}, 272, {vr(pT0)}
v_lshl_add_u32 {vr(pT0)}, {vr(pCh)}, 4, {vr(pT0)}
v_add_u32 {vr(pT0)}, {TRAW}, {vr(pT0)}
s_mov_b32 s24, {CSC:#x}
s_mov_b32 s25, {CSC:#x}
s_waitcnt vmcnt(4)
ds_write_b128 {vr(pT0)}, {vr(PP,4)}
''')
for q in range(4):
    a(f"v_lshlrev_b32 {vr(TT+2*q)}, 16, {vr(PP+q)}\nv_and_b32 {vr(TT+2*q+1)}, 0xffff0000, {vr(PP+q)}")
for q in range(4):
    a(f"v_pk_mul_f32 {vr(TT+2*q,2)}, {vr(TT+2*q,2)}, s[24:25]")
a(f'''
ds_write_b128 {vr(pT1)}, {vr(TT,4)}
ds_write_b128 {vr(pT1)}, {vr(TT+4,4)} offset:4096
v_mov_b32 {vr(pT0)}, {NTW}
v_mov_b32 {vr(pFE)}, {sr(sN)}
ds_write_b32 {vr(pT0)}, {vr(pFE)}
''')
taddr(0); taddr(1)
a("s_waitcnt lgkmcnt(0)\ns_barrier")
stamp(4)
tread(0)
a.c("lane constants for the final stage")
a(f'''
v_lshrrev_b32 {vr(pT0)}, 4, v0
v_bfe_u32 {vr(pT1)}, v0, 2, 2
v_lshl_add_u32 {vr(pT1)}, {vr(pT0)}, 3, {vr(pT1)}
v_mul_u32_u24 {vr(pTr)}, {RS}, {vr(pT1)}
v_and_b32 {vr(pT1)}, 3, v0
v_lshl_add_u32 {vr(pTr)}, {vr(pT1)}, 4, {vr(pTr)}
s_lshl_b32 s24, s3, 6
v_add_u32 {vr(pTr)}, s24, {vr(pTr)}
v_mul_u32_u24 {vr(pSr)}, {SS}, {vr(pCh)}
v_lshl_add_u32 {vr(pSr)}, {vr(pT0)}, 4, {vr(pSr)}
v_add_u32 {vr(pSr)}, {SM}, {vr(pSr)}
s_lshl_b32 s25, s2, 12
s_add_u32 s24, s24, s25
v_lshl_add_u32 {vr(pOut)}, {vr(pCh)}, 8, s24
v_lshl_add_u32 {vr(pOut)}, {vr(pT0)}, 4, {vr(pOut)}
s_lshl_b32 {sr(sB2)}, {sr(sB2)}, 16
s_waitcnt vmcnt(2)
''')
stamp(5)
issue(2)
produce(0, True)
tread(1)
a("s_waitcnt vmcnt(2)")
stamp(6)
issue(3)
produce(1, True)
issue(4); issue(5)
for k in range(2, 6):
    taddr(k)
a.c("finalizer metadata: lane handles slot 64*p + lane")
a(f'''
s_lshl_b32 s24, s3, 8
v_add_u32 {vr(pT0)}, s24, {vr(pTab)}
ds_read_b32 {vr(pFE)}, {vr(pT0)}
s_add_u32 s24, s24, {STG + 65536 + 2048 + 128}
v_lshl_add_u32 {vr(pFA)}, v0, 2, s24
s_lshl_b32 s24, s3, 7
s_add_u32 s24, s24, {SM}
v_lshl_add_u32 {vr(pFS)}, v0, 1, s24
s_waitcnt lgkmcnt(0)
''')
stamp(7)
a("s_barrier")
stamp(8)
trread(0); trread(1)
def step(k, vm):
    a(f"s_cmp_le_u32 {sr(sN)}, {k}\ns_cbranch_scc1 L_pdone")
    tread(k)
    a(f"s_waitcnt vmcnt({vm})")
    produce(k, False)
    a("s_waitcnt lgkmcnt(0)\ns_barrier")
    trread(k)
for k in range(2, 6):
    step(k, 2 * (5 - k))
a(f"s_cmp_gt_u32 {sr(sN)}, 6\ns_cbranch_scc1 L_pmore\nL_pdone:")
stamp(9)
def finalize(ent, slot_off):
    for c in range(4):
        a(f"ds_read_b32 {vr(TM+c)}, {vr(pFA)} offset:{4096*c + 4*slot_off}")
    a(f'''
    s_waitcnt lgkmcnt(0)
    v_add_f32 {vr(TM)}, {vr(TM)}, {vr(TM+1)}
    v_add_f32 {vr(TM+2)}, {vr(TM+2)}, {vr(TM+3)}
    v_add_f32 {vr(TM)}, {sr(sB2)}, {vr(TM)}
    v_add_f32 {vr(TM)}, {vr(TM)}, {vr(TM+2)}
    v_mul_f32 {vr(TM)}, {vr(TM)}, {vr(pT1)}
    v_cvt_pk_bf16_f32 {vr(TM)}, {vr(TM)}, {vr(TM)}
    s_mov_b64 exec, vcc
    ds_write_b16 {vr(pT0)}, {vr(TM)} offset:{2*slot_off}
    s_mov_b64 exec, -1
    ''')
def finalize_pre(ent):
    a(f'''
    v_and_b32 {vr(pT0)}, 15, {vr(ent)}
    v_mul_u32_u24 {vr(pT0)}, {SS}, {vr(pT0)}
    v_add_u32 {vr(pT0)}, {vr(pT0)}, {vr(pFS)}
    v_and_b32 {vr(pT1)}, 0xffff0000, {vr(ent)}
    v_cmp_ne_u32 vcc, 0, {vr(pT1)}
    ''')
finalize_pre(pFE)
a("s_waitcnt vmcnt(0)\ns_barrier\ns_barrier")
stamp(10)
finalize(pFE, 0)
a(f"s_cmp_gt_u32 {sr(sN)}, 8\ns_cbranch_scc1 L_pfin2\nL_pfin_back:")
a("s_waitcnt lgkmcnt(0)\ns_barrier")
stamp(11)
def mf16(d, A, B, C):
    a(f"v_mfma_f32_16x16x32_bf16 {vr(d,4)}, {vr(A,4)}, {vr(B,4)}, {C if isinstance(C,str) else vr(C,4)}")
for k in range(6):
    a(f"ds_read_b128 {vr(SB+4*k,4)}, {vr(pSr)} offset:{64*k}")
for k in range(6):
    a(f"s_waitcnt lgkmcnt({5-k})")
    mf16(O0, H + 8 * k, SB + 4 * k, "0" if k == 0 else O0)
    mf16(O1, H + 8 * k + 4, SB + 4 * k, "0" if k == 0 else O1)
a(f"s_cmp_gt_u32 {sr(sN)}, 6\ns_cbranch_scc1 L_psum2\nL_psum_back:")
a(f'''
s_nop 6
v_cvt_pk_bf16_f32 {vr(PP)}, {vr(O0)}, {vr(O0+1)}
v_cvt_pk_bf16_f32 {vr(PP+1)}, {vr(O0+2)}, {vr(O0+3)}
v_cvt_pk_bf16_f32 {vr(PP+2)}, {vr(O1)}, {vr(O1+1)}
v_cvt_pk_bf16_f32 {vr(PP+3)}, {vr(O1+2)}, {vr(O1+3)}
global_store_dwordx4 {vr(pOut)}, {vr(PP,4)}, s[18:19]
''')
stamp(12)
if STAMP:
    a("s_waitcnt vmcnt(0)")
stamp(13)
stamp_out(pT0, pT1)
a("s_endpgm")

a.c("more than six tiles of valid rows")
a("L_pmore:")
for k in range(6, 10):
    a(f"ds_read_b64 {vr(pEnt+2*k,2)}, {vr(pT2)} offset:{128*k}")
a("s_waitcnt lgkmcnt(0)")
for k in range(6, 10):
    issue(k)
for k in range(6, 10):
    taddr(k)
for k in range(6, 10):
    step(k, 2 * (9 - k))
a("s_branch L_pdone")
a("L_pfin2:")
a(f'''
s_cmp_lg_u32 s3, 0
s_cbranch_scc1 L_pfin_back
ds_read_b32 {vr(pFE)}, {vr(pTab)} offset:1024
s_waitcnt lgkmcnt(0)
''')
finalize_pre(pFE)
finalize(pFE, 256)
a("s_branch L_pfin_back")
a("L_psum2:")
for k in range(6, 10):
    a(f"ds_read_b128 {vr(SB+4*(k-6),4)}, {vr(pSr)} offset:{64*k}")
a("s_waitcnt lgkmcnt(0)")
for k in range(6, 10):
    mf16(O0, H + 8 * k, SB + 4 * (k - 6), O0)
    mf16(O1, H + 8 * k + 4, SB + 4 * (k - 6), O1)
a("s_nop 1\ns_branch L_psum_back")

nv = max(cons_hi, prod_hi)
nv = (nv + 7) // 8 * 8
a(f'''
.section .rodata,"a"
.p2align 6
.amdhsa_kernel {NAME}_kernel
.amdhsa_next_free_vgpr {nv}
.amdhsa_next_free_sgpr 102
.amdhsa_accum_offset {nv}
.amdhsa_group_segment_fixed_size 0
.amdhsa_kernarg_size 80
.amdhsa_user_sgpr_count 2
.amdhsa_user_sgpr_kernarg_segment_ptr 1
.amdhsa_system_sgpr_workgroup_id_x 1
.end_amdhsa_kernel
''')
out = [x for x in sys.argv[1:] if not x.startswith("--")]
open(out[0], "w").write(a.text())
print("vgprs consumer", cons_hi, "producer", prod_hi, file=sys.stderr)
```

```python
import sys, struct
from asmlib import Asm, Regs, vr, sr

NAME = "standalone__sequential_behavior_din__recsys"
STAMP = "--stamp" in sys.argv or "--cyc" in sys.argv
TIMER = "s_memtime" if "--cyc" in sys.argv else "s_memrealtime"
NST = 24

def f2u(x):
    return struct.unpack("<I", struct.pack("<f", x))[0]
CSC = f2u(-1.4426950408889634)

RS = 528
TILE = 32 * RS
RING = 0
STG = 3 * TILE
TP = STG + 5 * 16384
TRAW = TP + 8192
TAB = TRAW + 16 * 272
SM = TAB + 4 * 1280
SS = 672
NTW = SM + 12288
LDS = 163840
assert NTW + 4 <= LDS

a = Asm()
hdr = open("cdna_kernels/" + NAME + ".s.ref").read().split("; Override launch")[0]
a.lines.append(hdr.rstrip("\n"))
a.lines.append(f"; @launch grid=(256,1,1) block=(512,1,1) lds={LDS}")
a(f'''
.amdgcn_target "amdgcn-amd-amdhsa--gfx950"
.text
.globl {NAME}_kernel
.p2align 12
.fill 832, 4, 0xbf800000
.p2align 8
.type {NAME}_kernel,@function
{NAME}_kernel:
''')

nstamp = [0]
def stamp(k):
    if STAMP:
        a(f"{TIMER} s[{52+2*k}:{53+2*k}]")
def stamp_out(vt, vt2):
    if not STAMP:
        return
    a(f'''
    s_load_dwordx2 s[4:5], s[0:1], 72
    s_waitcnt lgkmcnt(0)
    s_lshl_b32 s6, s2, 3
    s_add_u32 s6, s6, s3
    s_lshl_b32 s6, s6, 7
    v_mov_b32 {vr(vt)}, s6
    s_mov_b64 exec, 1
    ''')
    for k in range(NST):
        a(f"v_mov_b32 {vr(vt2)}, s{52+2*k}\nglobal_store_dword {vr(vt)}, {vr(vt2)}, s[4:5] offset:{4*k}")
    a("s_waitcnt vmcnt(0)")

if STAMP:
    for k in range(1, NST):
        a(f"s_mov_b32 s{52+2*k}, 0")
stamp(0)
a('''
s_cmp_ge_u32 s2, 256
s_cbranch_scc1 L_exit
s_load_dwordx4 s[4:7], s[0:1], 0
s_load_dwordx2 s[8:9], s[0:1], 16
s_load_dwordx2 s[20:21], s[0:1], 24
s_load_dwordx8 s[12:19], s[0:1], 32
v_readfirstlane_b32 s3, v0
v_and_b32 v0, 63, v0
s_lshr_b32 s3, s3, 6
s_cmp_lt_u32 s3, 4
s_cbranch_scc1 L_producer
''')

R = Regs(1)
vW = [R.alloc() for _ in range(4)]
vTRW = R.alloc(); vTRW4 = R.alloc()
vT0 = R.alloc(); vT1 = R.alloc(); vT2 = R.alloc()
vFB0 = R.alloc(); vFB = R.alloc(); vEA = R.alloc(); vPA = R.alloc(); vTA = R.alloc(); vTC = R.alloc(); vEnt = R.alloc()
vTw = R.alloc()
WAC = R.alloc(32, 4); WD = R.alloc(32, 4)
X = R.alloc(16, 4); Y = R.alloc(16, 4); TR = R.alloc(16, 4)
F = R.alloc(32, 4)
EE = R.alloc(8, 4); SG = R.alloc(8, 4); W2A = R.alloc(8, 4); D2 = R.alloc(4, 4)
RA = R.alloc(16, 4); TF = R.alloc(32, 4); BA = R.alloc(4, 4); BB = R.alloc(4, 4)
RC = F
cons_hi = R.hi
sC = 24
sK10, sK01 = 26, 27
sM0, sNT, sRing, sOff = 28, 29, 30, 31
sW2 = 32

a.c("consumer: address setup")
a(f'''
s_sub_u32 s33, s3, 4
s_mov_b32 s22, 131072
s_mov_b32 s23, 0x20000
v_lshrrev_b32 {vr(vT0)}, 2, v0
v_and_b32 {vr(vT1)}, 3, v0
v_lshlrev_b32 {vr(vT1)}, 4, {vr(vT1)}
v_lshl_add_u32 {vr(vT0)}, {vr(vT0)}, 8, {vr(vT1)}
s_lshl_b32 s34, s33, 6
v_add_u32 {vr(vW[0])}, s34, {vr(vT0)}
v_add_u32 {vr(vW[1])}, {65536-1024}, {vr(vW[0])}
v_add_u32 {vr(vW[2])}, {4096-2048}, {vr(vW[0])}
v_add_u32 {vr(vW[3])}, {69632-3072}, {vr(vW[0])}
s_lshl_b32 {sr(sM0)}, s33, 12
s_add_u32 {sr(sM0)}, {sr(sM0)}, {STG}
v_and_b32 {vr(vT2)}, 31, v0
v_lshl_add_u32 {vr(vT2)}, {vr(vT2)}, 1, s34
s_mov_b32 m0, {sr(sM0)}
s_waitcnt lgkmcnt(0)
''')
stamp(1)
def dma_group(g, set_m0=True):
    gam = g % 5
    so = (g & 3) * 8192 + (g >> 2) * 32768
    if set_m0:
        a(f"s_add_u32 m0, {sr(sM0)}, {gam*16384}")
    if so:
        a(f"s_mov_b32 {sr(sOff)}, {so}")
    for j in range(4):
        a(f"buffer_load_dwordx4 {vr(vW[j])}, s[20:23], {sr(sOff) if so else 0} offen offset:{1024*j} lds")
dma_group(0, set_m0=False)
a(f'''
s_add_u32 s14, s14, s34
s_addc_u32 s15, s15, 0
s_load_dwordx16 {sr(sW2,16)}, s[14:15], 0
''')
dma_group(1)
a(f"global_load_ushort {vr(BA)}, {vr(vT2)}, s[12:13]")
for g in range(2, 5):
    dma_group(g)
a.c("remaining lane constants")
a(f'''
s_mov_b32 {sr(sC)}, {CSC:#x}
s_mov_b32 {sr(sC+1)}, {CSC:#x}
s_mov_b32 {sr(sK10)}, 0x00003f80
s_mov_b32 {sr(sK01)}, 0x3f800000
v_lshrrev_b32 {vr(vT0)}, 5, v0
v_bfe_u32 {vr(vT1)}, v0, 2, 2
v_lshlrev_b32 {vr(vT1)}, 6, {vr(vT1)}
v_lshl_add_u32 {vr(vTRW)}, {vr(vT0)}, 9, {vr(vT1)}
v_bfe_u32 {vr(vT1)}, v0, 4, 1
v_lshl_add_u32 {vr(vTRW)}, {vr(vT1)}, 5, {vr(vTRW)}
v_and_b32 {vr(vT1)}, 3, v0
v_lshl_add_u32 {vr(vTRW)}, {vr(vT1)}, 3, {vr(vTRW)}
v_add_u32 {vr(vTRW)}, {sr(sM0)}, {vr(vTRW)}
v_add_u32 {vr(vTRW4)}, 0x10000, {vr(vTRW)}
v_and_b32 {vr(vT1)}, 31, v0
v_mul_u32_u24 {vr(vFB0)}, {RS}, {vr(vT1)}
v_lshl_add_u32 {vr(vFB0)}, {vr(vT0)}, 4, {vr(vFB0)}
v_lshlrev_b32 {vr(vEA)}, 2, {vr(vT1)}
s_add_u32 s49, {sr(sM0)}, {65536+2048}
v_add_u32 {vr(vPA)}, s49, {vr(vEA)}
v_add_u32 {vr(vEA)}, {TAB}, {vr(vEA)}
s_add_u32 s49, {sr(sM0)}, 65536
v_lshl_add_u32 {vr(vTC)}, {vr(vT0)}, 8, s49
v_and_b32 {vr(vT1)}, 15, v0
v_lshl_add_u32 {vr(vTw)}, {vr(vT1)}, 4, {vr(vTC)}
v_mul_u32_u24 {vr(vT2)}, 272, {vr(vT1)}
v_lshl_add_u32 {vr(vT2)}, {vr(vT0)}, 4, {vr(vT2)}
v_add_u32 {vr(vT2)}, {TRAW}, {vr(vT2)}
''')
for i in range(1, 4):
    a(f"v_mov_b32 {vr(BA+i)}, 0\nv_mov_b32 {vr(BB+i)}, 0")
a(f"v_mov_b32 {vr(BB)}, 0")
for i in range(8):
    a(f"v_mov_b32 {vr(W2A+i)}, 0")
a.c("layer-2 A operand: rows m with (m>>2)&1 == kq&1 carry w2, other lanes stay zero")
a(f'''
s_waitcnt lgkmcnt(0)
s_mov_b32 exec_lo, -1
s_mov_b32 exec_hi, 0
v_mov_b32 {vr(BB)}, 0x3f80
s_mov_b32 exec_lo, 0xf0f00f0f
''')
for j in range(2):
    for q in range(4):
        a(f"v_mov_b32 {vr(W2A+4*j+q)}, s{sW2 + 8*j + 4*(q>>1) + (q&1)}")
a("s_mov_b32 exec_lo, 0\ns_mov_b32 exec_hi, 0xf0f00f0f")
for j in range(2):
    for q in range(4):
        a(f"v_mov_b32 {vr(W2A+4*j+q)}, s{sW2 + 8*j + 4*(q>>1) + 2 + (q&1)}")
a("s_mov_b64 exec, -1")

def tr_group(g):
    gam = g % 5
    base, off = (vTRW4, 0) if gam == 4 else (vTRW, gam * 16384)
    for j in range(4):
        s = 2 * (g & 3) + (j >> 1)
        if j & 1:
            dst = (RC if g < 4 else WD) + 4 * s
        else:
            dst = RA + 8 * (g & 1) + 4 * (j >> 1)
        for jj in range(2):
            a(f"ds_read_b64_tr_b16 {vr(dst+2*jj,2)}, {vr(base)} offset:{off + 1024*j + 256*jj}")
def combine(g):
    for h in range(2):
        s = 2 * g + h
        ra = RA + 8 * (g & 1) + 4 * h
        rc = RC + 4 * s
        for q in range(4):
            a(f"v_lshlrev_b32 {vr(EE+2*q)}, 16, {vr(ra+q)}\nv_and_b32 {vr(EE+2*q+1)}, 0xffff0000, {vr(ra+q)}")
        for q in range(4):
            a(f"v_dot2_f32_bf16 {vr(EE+2*q)}, {vr(rc+q)}, {sr(sK10)}, {vr(EE+2*q)}")
            a(f"v_dot2_f32_bf16 {vr(EE+2*q+1)}, {vr(rc+q)}, {sr(sK01)}, {vr(EE+2*q+1)}")
        for q in range(4):
            a(f"v_pk_mul_f32 {vr(EE+2*q,2)}, {vr(EE+2*q,2)}, {sr(sC,2)}")
        for q in range(4):
            a(f"v_cvt_pk_bf16_f32 {vr(WAC+4*s+q)}, {vr(EE+2*q)}, {vr(EE+2*q+1)}")
def mf32(d, A, B, C):
    a(f"v_mfma_f32_32x32x16_bf16 {vr(d,16)}, {vr(A,4)}, {vr(B,4)}, {C if isinstance(C,str) else vr(C,16)}")

a.c("weight groups 0..3: (Wa,Wc) pairs; 4..7: (Wb,Wd) pairs")
FINE = "--fine" in sys.argv
def fs(k):
    if FINE:
        stamp(k)
fs(10)
a("s_waitcnt vmcnt(17)")
stamp(2)
tr_group(0)
a("s_waitcnt lgkmcnt(0)")
fs(11)
dma_group(5)
fs(17)
a("s_waitcnt vmcnt(17)")
tr_group(1)
fs(18)
combine(0)
fs(19)
a("s_waitcnt lgkmcnt(0)")
dma_group(6)
fs(20)
a("s_barrier")
fs(21)
a("s_waitcnt vmcnt(16)")
tr_group(2)
combine(1)
fs(22)
a("s_waitcnt lgkmcnt(0)")
dma_group(7)
fs(23)
a("s_waitcnt vmcnt(16)")
tr_group(3)
for s in range(8):
    if s == 7:
        a("s_waitcnt lgkmcnt(14)")
    a(f"ds_read_b128 {vr(TF+4*s,4)}, {vr(vT2)} offset:{32*s}")
combine(2)
a("s_waitcnt vmcnt(12) lgkmcnt(0)")
stamp(3)
tr_group(4)
a(f"v_mov_b32 {vr(vT0)}, {NTW}")
a(f"ds_read_b32 {vr(vT1)}, {vr(vT0)}")
a(f"ds_read_b32 {vr(vEnt)}, {vr(vEA)}")
combine(3)
mf32(X, BA, BB, "0")
mf32(Y, RC, TF, "0")
mf32(Y, RC + 4, TF + 4, Y)
for g in range(5, 9):
    if g < 8:
        a(f"s_waitcnt vmcnt({4*(7-g)}) lgkmcnt(0)")
        tr_group(g)
    else:
        a("s_waitcnt lgkmcnt(0)")
        stamp(4)
    for h in range(2):
        s = 2 * (g - 5) + h
        mf32(X, RA + 8 * ((g - 1) & 1) + 4 * h, TF + 4 * s, X)
    if g < 8:
        for h in range(2):
            s = 2 * (g - 4) + h
            mf32(Y, RC + 4 * s, TF + 4 * s, Y)
a(f'''
v_readfirstlane_b32 {sr(sNT)}, {vr(vT1)}
v_and_b32 {vr(vTA)}, 15, {vr(vEnt)}
v_lshl_add_u32 {vr(vTA)}, {vr(vTA)}, 4, {vr(vTC)}
ds_read_b32 {vr(vEnt)}, {vr(vEA)} offset:128
s_barrier
''')
stamp(5)
NF = 7
for s in range(NF):
    a(f"ds_read_b128 {vr(F+4*s,4)}, {vr(vFB0)} offset:{32*s}")
a("s_nop 1")
for q in range(8):
    a(f"v_pk_add_f32 {vr(X+2*q,2)}, {vr(X+2*q,2)}, {vr(Y+2*q,2)} neg_lo:[0,1] neg_hi:[0,1]")
for q in range(8):
    a(f"v_pk_mul_f32 {vr(X+2*q,2)}, {vr(X+2*q,2)}, {sr(sC,2)}")
a("s_waitcnt lgkmcnt(0)")
for q in range(4):
    a(f"ds_write_b128 {vr(vTw)}, {vr(X+4*q,4)} offset:{512*q}")
for q in range(4):
    a(f"ds_read_b128 {vr(TR+4*q,4)}, {vr(vTA)} offset:{512*q}")
a(f'''
v_mov_b32 {vr(vFB)}, {vr(vFB0)}
s_mov_b32 {sr(sRing)}, 0
s_waitcnt lgkmcnt(0)
''')
stamp(6)

def sig_ops():
    ops = []
    e = lambda j: EE + (j & 7)
    for t in range(16 + 5):
        if t < 16:
            ops.append((f"v_exp_f32 {vr(e(t))}, {vr(Y+t)}", 8, "E"))
        j = t - 1
        if 0 <= j < 16:
            ops.append((f"v_add_f32 {vr(e(j))}, 1.0, {vr(e(j))}", 4, "A"))
        j = t - 3
        if 0 <= j < 16:
            ops.append((f"v_rcp_f32 {vr(e(j))}, {vr(e(j))}", 8, "R"))
        j = t - 5
        if 0 <= j < 16 and j & 1:
            ops.append((f"v_cvt_pk_bf16_f32 {vr(SG+(j>>1))}, {vr(e(j-1))}, {vr(e(j))}", 4, f"C{j>>1}"))
    return ops
L0 = f"v_mfma_f32_16x16x32_bf16 {vr(D2,4)}, {vr(W2A,4)}, {vr(SG,4)}, 0"
L1 = f"v_mfma_f32_16x16x32_bf16 {vr(D2,4)}, {vr(W2A+4,4)}, {vr(SG+4,4)}, {vr(D2,4)}"
PW = f"ds_write_b32 {vr(vPA)}, {vr(D2)}"

def split_sig():
    ops = sig_ops()
    lastE = max(i for i, o in enumerate(ops) if o[2] == "E")
    head, tail = ops[:lastE+1], ops[lastE+1:]
    slots = {s: [] for s in range(16)}
    tot = sum(o[1] for o in head)
    acc = 0
    for o in head:
        s = 2 + min(12, int(acc * 13 / tot))
        slots[s].append(o); acc += o[1]
    tot = sum(o[1] for o in tail); acc = 0
    for o in tail:
        s = [15, 0, 1][min(2, int(acc * 3 / tot))]
        slots[s].append(o); acc += o[1]
    return slots

def body(first):
    slots = split_sig()
    q = getattr(body, "queue")
    def lds(text, tag):
        a(text); q.append(tag)
    def need(tags):
        idx = [i for i, t in enumerate(q) if t in tags]
        if idx:
            n = len(q) - 1 - max(idx)
            a(f"s_waitcnt lgkmcnt({n})")
            del q[:max(idx)+1]
    pendL0 = None
    for s in range(16):
        if s % 2 == 0:
            tags = {f"f{s}", f"f{s+1}"}
            if s == 0:
                tags |= {"T0", "T1", "T2", "T3"}
            if s == 2:
                tags |= {"ent"}
            need(tags)
        A = (WAC + 4 * s) if s < 8 else (WD + 4 * (s - 8))
        mf32(Y if s == 15 else X, A, F + 4 * (s & 7), TR if s == 0 else X)
        n = s + NF
        if n == 16:
            if not first:
                a("s_barrier")
        nn = n & 15
        lds(f"ds_read_b128 {vr(F+4*(n&7),4)}, {vr(vFB)} offset:{32*nn}", f"f{nn}")
        if s == 8:
            a(f'''
            s_add_u32 {sr(sRing)}, {sr(sRing)}, {TILE}
            s_cmp_eq_u32 {sr(sRing)}, {3*TILE}
            s_cselect_b32 {sr(sRing)}, 0, {sr(sRing)}
            v_add_u32 {vr(vFB)}, {sr(sRing)}, {vr(vFB0)}
            ''')
        if s == 2:
            a(f"v_and_b32 {vr(vTA)}, 15, {vr(vEnt)}\nv_lshl_add_u32 {vr(vTA)}, {vr(vTA)}, 4, {vr(vTC)}")
            a(f"v_add_u32 {vr(vEA)}, 128, {vr(vEA)}")
        if s in (3, 5, 7, 9):
            t = (s - 3) // 2
            lds(f"ds_read_b128 {vr(TR+4*t,4)}, {vr(vTA)} offset:{512*t}", f"T{t}")
        if s == 11:
            lds(f"ds_read_b32 {vr(vEnt)}, {vr(vEA)} offset:128", "ent")
        if not first:
            if s == 2:
                a(L1)
            if s == 5:
                lds(PW, "pw")
            if s == 6:
                a(f"v_add_u32 {vr(vPA)}, 128, {vr(vPA)}")
            if pendL0 == s:
                a(L0)
            for o in slots[s]:
                a(o[0])
                if o[2] == "C3":
                    pendL0 = s + 1
    return list(q)

if "--prio" in sys.argv:
    a("s_setprio 3")
a.c("tile 0 chain")
body.queue = []
q0 = body(True)
a(f"s_sub_u32 {sr(sNT)}, {sr(sNT)}, 1")
stamp(7)
if STAMP:
    a("s_mov_b32 m0, 0")
a(".p2align 3\nL_cloop:")
if STAMP:
    a(f"{TIMER} s[50:51]")
body.queue = list(q0)
q1 = body(False)
assert q0 == q1, (q0, q1)
if STAMP:
    a("s_movreld_b32 s76, s50\ns_add_u32 m0, m0, 2")
a(f'''
s_sub_u32 {sr(sNT)}, {sr(sNT)}, 1
s_cmp_lg_u32 {sr(sNT)}, 0
s_cbranch_scc1 L_cloop
''')
stamp(8)
a.c("drain: finish tile nt-2, then sigmoid of tile nt-1")
slots = split_sig()
for s in (0, 1):
    for o in slots[s]:
        a(o[0])
a("s_nop 1")
a(L1)
a("s_nop 3")
ops = sig_ops()
cnt = 0
for i, o in enumerate(ops):
    if o[2] == "A" and ops[i-1][2] == "E" and ops[i-1][0].split()[1] == o[0].split()[1]:
        a("s_nop 0")
    if o[2].startswith("C") and ops[i-1][2] == "R":
        prev_dst = ops[i-1][0].split()[1].rstrip(",")
        if prev_dst in o[0].replace(",", " ").split()[2:]:
            a("s_nop 0")
    a(o[0])
    cnt += 1
    if cnt == 8:
        a(PW)
    if i >= 2 and ops[i-2][2] == "C3":
        a(L0)
a(f'''
s_nop 1
{L1}
s_nop 7
ds_write_b32 {vr(vPA)}, {vr(D2)} offset:128
s_waitcnt lgkmcnt(0)
s_barrier
''')
stamp(9)
stamp_out(vT0, vT1)
a("L_exit:\ns_endpgm")

a(".p2align 12\nL_producer:")
R = Regs(1)
pE = R.alloc(5, 1); pM = R.alloc(5, 1)
pT0 = R.alloc(); pT1 = R.alloc(); pT2 = R.alloc(); pCh = R.alloc(); pChT = R.alloc()
pWr = R.alloc(); pTr = R.alloc(); pSr = R.alloc(); pTab = R.alloc(); pO = R.alloc(2, 2)
pEnt = R.alloc(20, 2)
H = R.alloc(80, 4)
TT = R.alloc(16, 4); PP = R.alloc(8, 4); TM = R.alloc(4, 4)
SB = R.alloc(24, 4); O0 = R.alloc(4, 4); O1 = R.alloc(4, 4)
pFE = R.alloc(); pFA = R.alloc(); pFS = R.alloc(); pOut = R.alloc()
prod_hi = R.hi
sTab, sN, sMk, sB2 = 28, 30, 31, 33
a(f'''
s_mul_i32 s24, s2, 640
v_lshl_add_u32 {vr(pT0)}, v0, 1, s24
s_lshl_b32 s25, s2, 12
s_lshl_b32 s26, s3, 10
s_add_u32 s25, s25, s26
v_lshl_add_u32 {vr(pT1)}, v0, 4, s25
s_mul_i32 {sr(sTab)}, s3, 1280
s_add_u32 {sr(sTab)}, {sr(sTab)}, {TAB}
s_waitcnt lgkmcnt(0)
''')
stamp(1)
for g in range(5):
    a(f"global_load_ushort {vr(pM+g)}, {vr(pT0)}, s[8:9] offset:{128*g}")
a(f"global_load_dwordx4 {vr(PP,4)}, {vr(pT1)}, s[4:5]")
a(f"s_load_dword {sr(sB2)}, s[16:17], 0")
a.c("pad entries, zeroed score matrix, per-row metadata")
a(f'''
v_mov_b32 {vr(TM)}, 0x1ff0
v_mov_b32 {vr(TM+1)}, 0x1ff0
v_mov_b32 {vr(TM+2)}, 0x1ff0
v_mov_b32 {vr(TM+3)}, 0x1ff0
v_lshl_add_u32 {vr(pT2)}, v0, 4, {sr(sTab)}
v_lshl_add_u32 {vr(pTab)}, v0, 2, {sr(sTab)}
ds_write_b128 {vr(pT2)}, {vr(TM,4)}
ds_write_b32 {vr(pTab)}, {vr(TM)} offset:1024
s_mul_i32 s26, s3, 3072
s_add_u32 s26, s26, {SM}
v_lshl_add_u32 {vr(pT2)}, v0, 4, s26
''')
for i in range(4):
    a(f"v_mov_b32 {vr(O0+i)}, 0")
for i in range(3):
    a(f"ds_write_b128 {vr(pT2)}, {vr(O0,4)} offset:{1024*i}")
for g in range(5):
    a(f'''
    v_add_u32 {vr(pT0)}, {64*g}, v0
    v_mul_u32_u24 {vr(pT1)}, 3277, {vr(pT0)}
    v_lshrrev_b32 {vr(pT1)}, 16, {vr(pT1)}
    v_lshl_add_u32 {vr(pE+g)}, {vr(pT0)}, 4, {vr(pT1)}
    ''')
a(f'''
s_mul_i32 s24, s2, 81920
s_add_u32 s36, s6, s24
s_addc_u32 s37, s7, 0
s_mov_b32 s38, 81920
s_mov_b32 s39, 0x20000
s_mov_b32 {sr(sMk)}, 0xfff0
v_and_b32 {vr(pCh)}, 15, v0
v_lshrrev_b32 {vr(pT0)}, 4, v0
v_lshlrev_b32 {vr(pChT)}, 4, {vr(pCh)}
s_mul_i32 s24, s3, {8*RS}
v_mul_u32_u24 {vr(pWr)}, {2*RS}, {vr(pT0)}
v_add3_u32 {vr(pWr)}, {vr(pWr)}, {vr(pChT)}, s24
s_lshl_b32 s24, s3, 5
s_add_u32 s24, s24, {sr(sTab)}
v_lshl_add_u32 {vr(pT2)}, {vr(pT0)}, 3, s24
s_mov_b32 {sr(sN)}, 0
s_lshr_b32 s27, {sr(sTab)}, 2
''')
a.c("compaction: slot = rank of the row among nonzero mask entries")
for g in range(5):
    a(f"s_waitcnt vmcnt({5-g})")
    if g == 0:
        stamp(2)
    a(f'''
    v_cmp_ne_u32 vcc, 0, {vr(pM+g)}
    v_lshl_or_b32 {vr(pE+g)}, {vr(pM+g)}, 16, {vr(pE+g)}
    v_mov_b32 {vr(pT0)}, s27
    v_mbcnt_lo_u32_b32 {vr(pT0)}, vcc_lo, {vr(pT0)}
    v_mbcnt_hi_u32_b32 {vr(pT0)}, vcc_hi, {vr(pT0)}
    s_bcnt1_i32_b64 s24, vcc
    v_lshlrev_b32 {vr(pT0)}, 2, {vr(pT0)}
    s_mov_b64 exec, vcc
    s_add_u32 s27, s27, s24
    ds_write_b32 {vr(pT0)}, {vr(pE+g)}
    s_mov_b64 exec, -1
    ''')
for k in range(6):
    a(f"ds_read_b64 {vr(pEnt+2*k,2)}, {vr(pT2)} offset:{128*k}")
a(f'''
s_lshr_b32 s24, {sr(sTab)}, 2
s_sub_u32 {sr(sN)}, s27, s24
s_add_u32 {sr(sN)}, {sr(sN)}, 31
s_lshr_b32 {sr(sN)}, {sr(sN)}, 5
s_max_u32 {sr(sN)}, {sr(sN)}, 2
v_add_u32 {vr(pChT)}, {TP}, {vr(pChT)}
s_waitcnt lgkmcnt(0)
''')
def issue(k):
    for j in range(2):
        e = pEnt + 2 * k + j
        a(f'''
        v_and_or_b32 {vr(pO+j)}, {vr(e)}, {sr(sMk)}, {vr(pCh)}
        v_lshlrev_b32 {vr(pO+j)}, 4, {vr(pO+j)}
        buffer_load_dwordx4 {vr(H+8*k+4*j,4)}, {vr(pO+j)}, s[36:39], 0 offen {"nt" if "--nt" in sys.argv else ""}
        ''')
def taddr(k):
    for j in range(2):
        e = pEnt + 2 * k + j
        a(f"v_and_b32 {vr(e)}, 15, {vr(e)}\nv_lshl_add_u32 {vr(e)}, {vr(e)}, 8, {vr(pChT)}")
def tread(k):
    for j in range(2):
        e = pEnt + 2 * k + j
        a(f"ds_read_b128 {vr(TT+8*j,4)}, {vr(e)}\nds_read_b128 {vr(TT+8*j+4,4)}, {vr(e)} offset:4096")
def produce(k, pk, extra_lds=0):
    sl = (k % 3) * TILE
    for j in range(2):
        h = H + 8 * k + 4 * j
        a(f"ds_write_b128 {vr(pWr)}, {vr(h,4)} offset:{sl + RS*j}")
    for j in range(2):
        h = H + 8 * k + 4 * j
        a(f"s_waitcnt lgkmcnt({4 if j == 0 else 3})")
        for q in range(4):
            t = TM + 2 * (q & 1)
            a(f"v_lshlrev_b32 {vr(t)}, 16, {vr(h+q)}\nv_and_b32 {vr(t+1)}, 0xffff0000, {vr(h+q)}")
            if pk:
                a(f"v_pk_mul_f32 {vr(t,2)}, {vr(t,2)}, {vr(TT+8*j+2*q,2)}")
            else:
                a(f"v_mul_f32 {vr(t)}, {vr(t)}, {vr(TT+8*j+2*q)}\nv_mul_f32 {vr(t+1)}, {vr(t+1)}, {vr(TT+8*j+2*q+1)}")
            a(f"v_cvt_pk_bf16_f32 {vr(PP+4*j+q)}, {vr(t)}, {vr(t+1)}")
        a(f"ds_write_b128 {vr(pWr)}, {vr(PP+4*j,4)} offset:{sl + RS*j + 256}")
def trread(k):
    sl = (k % 3) * TILE
    for mt in range(2):
        for jj in range(2):
            a(f"ds_read_b64_tr_b16 {vr(H+8*k+4*mt+2*jj,2)}, {vr(pTr)} offset:{sl + jj*4*RS + mt*8}")

issue(0); issue(1)
stamp(3)
a.c("target tables: raw bf16 rows and fp32 rows scaled by -log2(e)")
a(f'''
v_lshrrev_b32 {vr(pT0)}, 4, v0
s_lshl_b32 s24, s3, 2
v_add_u32 {vr(pT0)}, s24, {vr(pT0)}
v_lshl_add_u32 {vr(pT1)}, {vr(pT0)}, 8, {vr(pChT)}
v_mul_u32_u24 {vr(pT0)}, 272, {vr(pT0)}
v_lshl_add_u32 {vr(pT0)}, {vr(pCh)}, 4, {vr(pT0)}
v_add_u32 {vr(pT0)}, {TRAW}, {vr(pT0)}
s_mov_b32 s24, {CSC:#x}
s_mov_b32 s25, {CSC:#x}
s_waitcnt vmcnt(4)
ds_write_b128 {vr(pT0)}, {vr(PP,4)}
''')
for q in range(4):
    a(f"v_lshlrev_b32 {vr(TT+2*q)}, 16, {vr(PP+q)}\nv_and_b32 {vr(TT+2*q+1)}, 0xffff0000, {vr(PP+q)}")
for q in range(4):
    a(f"v_pk_mul_f32 {vr(TT+2*q,2)}, {vr(TT+2*q,2)}, s[24:25]")
a(f'''
ds_write_b128 {vr(pT1)}, {vr(TT,4)}
ds_write_b128 {vr(pT1)}, {vr(TT+4,4)} offset:4096
v_mov_b32 {vr(pT0)}, {NTW}
v_mov_b32 {vr(pFE)}, {sr(sN)}
ds_write_b32 {vr(pT0)}, {vr(pFE)}
''')
taddr(0); taddr(1)
a("s_waitcnt lgkmcnt(0)\ns_barrier")
stamp(4)
tread(0)
a.c("lane constants for the final stage")
a(f'''
v_lshrrev_b32 {vr(pT0)}, 4, v0
v_bfe_u32 {vr(pT1)}, v0, 2, 2
v_lshl_add_u32 {vr(pT1)}, {vr(pT0)}, 3, {vr(pT1)}
v_mul_u32_u24 {vr(pTr)}, {RS}, {vr(pT1)}
v_and_b32 {vr(pT1)}, 3, v0
v_lshl_add_u32 {vr(pTr)}, {vr(pT1)}, 4, {vr(pTr)}
s_lshl_b32 s24, s3, 6
v_add_u32 {vr(pTr)}, s24, {vr(pTr)}
v_mul_u32_u24 {vr(pSr)}, {SS}, {vr(pCh)}
v_lshl_add_u32 {vr(pSr)}, {vr(pT0)}, 4, {vr(pSr)}
v_add_u32 {vr(pSr)}, {SM}, {vr(pSr)}
s_lshl_b32 s25, s2, 12
s_add_u32 s24, s24, s25
v_lshl_add_u32 {vr(pOut)}, {vr(pCh)}, 8, s24
v_lshl_add_u32 {vr(pOut)}, {vr(pT0)}, 4, {vr(pOut)}
s_lshl_b32 {sr(sB2)}, {sr(sB2)}, 16
s_waitcnt vmcnt(2)
''')
stamp(5)
issue(2)
produce(0, True)
tread(1)
a("s_waitcnt vmcnt(2)")
stamp(6)
issue(3)
produce(1, True)
issue(4); issue(5)
for k in range(2, 6):
    taddr(k)
a.c("finalizer metadata: lane handles slot 64*p + lane")
a(f'''
s_lshl_b32 s24, s3, 8
v_add_u32 {vr(pT0)}, s24, {vr(pTab)}
ds_read_b32 {vr(pFE)}, {vr(pT0)}
s_add_u32 s24, s24, {STG + 65536 + 2048 + 128}
v_lshl_add_u32 {vr(pFA)}, v0, 2, s24
s_lshl_b32 s24, s3, 7
s_add_u32 s24, s24, {SM}
v_lshl_add_u32 {vr(pFS)}, v0, 1, s24
s_waitcnt lgkmcnt(0)
''')
stamp(7)
a("s_barrier")
stamp(8)
trread(0); trread(1)
def step(k, vm):
    a(f"s_cmp_le_u32 {sr(sN)}, {k}\ns_cbranch_scc1 L_pdone")
    tread(k)
    a(f"s_waitcnt vmcnt({vm})")
    produce(k, False)
    a("s_waitcnt lgkmcnt(0)")
    if k < 6:
        stamp(14 + 2 * (k - 2))
    a("s_barrier")
    if k < 6:
        stamp(15 + 2 * (k - 2))
    trread(k)
for k in range(2, 6):
    step(k, 2 * (5 - k))
a(f"s_cmp_gt_u32 {sr(sN)}, 6\ns_cbranch_scc1 L_pmore\nL_pdone:")
stamp(9)
def finalize(ent, slot_off):
    for c in range(4):
        a(f"ds_read_b32 {vr(TM+c)}, {vr(pFA)} offset:{4096*c + 4*slot_off}")
    a(f'''
    s_waitcnt lgkmcnt(0)
    v_add_f32 {vr(TM)}, {vr(TM)}, {vr(TM+1)}
    v_add_f32 {vr(TM+2)}, {vr(TM+2)}, {vr(TM+3)}
    v_add_f32 {vr(TM)}, {sr(sB2)}, {vr(TM)}
    v_add_f32 {vr(TM)}, {vr(TM)}, {vr(TM+2)}
    v_mul_f32 {vr(TM)}, {vr(TM)}, {vr(pT1)}
    v_cvt_pk_bf16_f32 {vr(TM)}, {vr(TM)}, {vr(TM)}
    s_mov_b64 exec, vcc
    ds_write_b16 {vr(pT0)}, {vr(TM)} offset:{2*slot_off}
    s_mov_b64 exec, -1
    ''')
def finalize_pre(ent):
    a(f'''
    v_and_b32 {vr(pT0)}, 15, {vr(ent)}
    v_mul_u32_u24 {vr(pT0)}, {SS}, {vr(pT0)}
    v_add_u32 {vr(pT0)}, {vr(pT0)}, {vr(pFS)}
    v_and_b32 {vr(pT1)}, 0xffff0000, {vr(ent)}
    v_cmp_ne_u32 vcc, 0, {vr(pT1)}
    ''')
finalize_pre(pFE)
a("s_waitcnt vmcnt(0)\ns_barrier\ns_barrier")
stamp(10)
finalize(pFE, 0)
a(f"s_cmp_gt_u32 {sr(sN)}, 8\ns_cbranch_scc1 L_pfin2\nL_pfin_back:")
a("s_waitcnt lgkmcnt(0)\ns_barrier")
stamp(11)
def mf16(d, A, B, C):
    a(f"v_mfma_f32_16x16x32_bf16 {vr(d,4)}, {vr(A,4)}, {vr(B,4)}, {C if isinstance(C,str) else vr(C,4)}")
for k in range(6):
    a(f"ds_read_b128 {vr(SB+4*k,4)}, {vr(pSr)} offset:{64*k}")
for k in range(6):
    a(f"s_waitcnt lgkmcnt({5-k})")
    mf16(O0, H + 8 * k, SB + 4 * k, "0" if k == 0 else O0)
    mf16(O1, H + 8 * k + 4, SB + 4 * k, "0" if k == 0 else O1)
a(f"s_cmp_gt_u32 {sr(sN)}, 6\ns_cbranch_scc1 L_psum2\nL_psum_back:")
a(f'''
s_nop 6
v_cvt_pk_bf16_f32 {vr(PP)}, {vr(O0)}, {vr(O0+1)}
v_cvt_pk_bf16_f32 {vr(PP+1)}, {vr(O0+2)}, {vr(O0+3)}
v_cvt_pk_bf16_f32 {vr(PP+2)}, {vr(O1)}, {vr(O1+1)}
v_cvt_pk_bf16_f32 {vr(PP+3)}, {vr(O1+2)}, {vr(O1+3)}
global_store_dwordx4 {vr(pOut)}, {vr(PP,4)}, s[18:19]
''')
stamp(12)
if STAMP:
    a("s_waitcnt vmcnt(0)")
stamp(13)
stamp_out(pT0, pT1)
a("s_endpgm")

a.c("more than six tiles of valid rows")
a("L_pmore:")
for k in range(6, 10):
    a(f"ds_read_b64 {vr(pEnt+2*k,2)}, {vr(pT2)} offset:{128*k}")
a("s_waitcnt lgkmcnt(0)")
for k in range(6, 10):
    issue(k)
for k in range(6, 10):
    taddr(k)
for k in range(6, 10):
    step(k, 2 * (9 - k))
a("s_branch L_pdone")
a("L_pfin2:")
a(f'''
s_cmp_lg_u32 s3, 0
s_cbranch_scc1 L_pfin_back
ds_read_b32 {vr(pFE)}, {vr(pTab)} offset:1024
s_waitcnt lgkmcnt(0)
''')
finalize_pre(pFE)
finalize(pFE, 256)
a("s_branch L_pfin_back")
a("L_psum2:")
for k in range(6, 10):
    a(f"ds_read_b128 {vr(SB+4*(k-6),4)}, {vr(pSr)} offset:{64*k}")
a("s_waitcnt lgkmcnt(0)")
for k in range(6, 10):
    mf16(O0, H + 8 * k, SB + 4 * (k - 6), O0)
    mf16(O1, H + 8 * k + 4, SB + 4 * (k - 6), O1)
a("s_nop 1\ns_branch L_psum_back")

nv = max(cons_hi, prod_hi)
nv = (nv + 7) // 8 * 8
a(f'''
.section .rodata,"a"
.p2align 6
.amdhsa_kernel {NAME}_kernel
.amdhsa_next_free_vgpr {nv}
.amdhsa_next_free_sgpr 102
.amdhsa_accum_offset {nv}
.amdhsa_group_segment_fixed_size 0
.amdhsa_kernarg_size 80
.amdhsa_user_sgpr_count 2
.amdhsa_user_sgpr_kernarg_segment_ptr 1
.amdhsa_system_sgpr_workgroup_id_x 1
.end_amdhsa_kernel
''')
out = [x for x in sys.argv[1:] if not x.startswith("--")]
open(out[0], "w").write(a.text())
print("vgprs consumer", cons_hi, "producer", prod_hi, file=sys.stderr)
```

```python
import sys, struct
from asmlib import Asm, Regs, vr, sr

NAME = "standalone__sequential_behavior_din__recsys"
ARGS = sys.argv[1:]
def opt(name, default):
    for x in ARGS:
        if x.startswith(f"--{name}="):
            return type(default)(x.split("=", 1)[1])
    return default
STAMP = "--stamp" in ARGS or "--cyc" in ARGS
TIMER = "s_memtime" if "--cyc" in ARGS else "s_memrealtime"
NST = 24
NF = opt("nf", 6)
NT = opt("nt", "")
PRIO_C = opt("prioc", 1)
PRIO_P = opt("priop", 0)
PRIO_P2 = opt("priop2", 2)
DEFER = opt("defer", 1)
TOUCH = opt("touch", 1)
ORDER = opt("order", "6a7bcd")
PRIO_P3 = opt("priop3", 0)
PRIO_PT = opt("priopt", 2)
RP0S = opt("rp0s", 5)
CPLAN = [[int(y) for y in x] for x in opt("cplan", "0,12,34,56,7,,,").split(",")]
PRIO_P0 = opt("priop0", 0)

def f2u(x):
    return struct.unpack("<I", struct.pack("<f", x))[0]
CSC = f2u(-1.4426950408889634)

RG = 1040
SLOT = 8 * RG
HS = 0
PR = 6 * SLOT
PST = 9 * SLOT
TP = PST + 65536
TRAW = TP + 8192
TAB = TRAW + 4 * RG
W2T = TAB + 1280
ZER = W2T + 256
B1R = ZER + 64
NTW = B1R + 256
SL = NTW + 64
SLS = 96
MSK = SL + 16 * SLS
END = MSK + 1024
EB = PST - 65536
TOF = 128
assert (PST + TOF) % 256 == 0
SM = PST + 16384
SS = 672
PB = PST + 32768
LDS = 163840
assert END <= LDS, END
GSW = [0, 12, 4, 8]

a = Asm()
hdr = open("cdna_kernels/" + NAME + ".s.ref").read().split("; Override launch")[0]
a.lines.append(hdr.rstrip("\n"))
a.lines.append(f"; @launch grid=(256,1,1) block=(512,1,1) lds={LDS}")
a(f'''
.amdgcn_target "amdgcn-amd-amdhsa--gfx950"
.text
.globl {NAME}_kernel
.p2align 12
.fill 832, 4, 0xbf800000
.p2align 8
.type {NAME}_kernel,@function
{NAME}_kernel:
''')

ROLE = ["c"]
SEL = {r: (None if opt("s" + r, "all") == "all" else {int(x) for x in opt("s" + r, "all").split(",")}) for r in "cp"}
def stamp(k):
    if STAMP and (k == 0 or SEL[ROLE[0]] is None or k in SEL[ROLE[0]]):
        a(f"{TIMER} s[{52+2*k}:{53+2*k}]")
def stamp_out(vt, vt2):
    if not STAMP:
        return
    a(f'''
    s_load_dwordx2 s[4:5], s[0:1], 72
    s_waitcnt lgkmcnt(0)
    s_lshl_b32 s6, s2, 3
    s_add_u32 s6, s6, s3
    s_lshl_b32 s6, s6, 7
    v_mov_b32 {vr(vt)}, s6
    s_mov_b64 exec, 1
    ''')
    for k in range(NST):
        a(f"v_mov_b32 {vr(vt2)}, s{52+2*k}\nglobal_store_dword {vr(vt)}, {vr(vt2)}, s[4:5] offset:{4*k}")
    a("s_waitcnt vmcnt(0)")
def mf32(d, A, B, C):
    a(f"v_mfma_f32_32x32x16_bf16 {vr(d,16)}, {vr(A,4)}, {vr(B,4)}, {C if isinstance(C,str) else vr(C,16)}")
def mf16(d, A, B, C, ty="bf16"):
    a(f"v_mfma_f32_16x16x32_{ty} {vr(d,4)}, {vr(A,4)}, {vr(B,4)}, {C if isinstance(C,str) else vr(C,4)}")

stamp(0)
a('''
s_load_dwordx4 s[4:7], s[0:1], 0
s_load_dwordx2 s[8:9], s[0:1], 16
s_load_dwordx2 s[20:21], s[0:1], 24
s_load_dwordx8 s[12:19], s[0:1], 32
s_cmp_ge_u32 s2, 256
s_cbranch_scc1 L_exit0
v_readfirstlane_b32 s3, v0
v_and_b32 v0, 63, v0
s_lshr_b32 s3, s3, 6
''')
if STAMP:
    for k in range(1, NST):
        a(f"s_mov_b32 s{52+2*k}, 0")
a('''
s_cmp_lt_u32 s3, 4
s_cbranch_scc1 L_producer
''')

R = Regs(1)
vAC = [R.alloc() for _ in range(4)]
vBO = [R.alloc() for _ in range(4)]
vDO = [R.alloc() for _ in range(4)]
vTE = R.alloc(); vTPs = R.alloc()
vC16 = [R.alloc(), R.alloc()]; vB16 = [R.alloc(), R.alloc()]
vT0 = R.alloc(); vT1 = R.alloc(); vT2 = R.alloc(); vT3 = R.alloc()
vHA = [R.alloc() for _ in range(4)]
vPRA = R.alloc(); vPA = R.alloc(); vTw = R.alloc(); vTC = R.alloc()
TA = R.alloc(10, 2)
WAC = R.alloc(32, 4); WD = R.alloc(32, 4)
RC = R.alloc(32, 4); C16 = R.alloc(32, 4); B16 = R.alloc(32, 4)
TF = R.alloc(16, 4); TB = R.alloc(8, 4); TC = R.alloc(8, 4)
EE = R.alloc(8, 4); W2A = R.alloc(8, 4)
cons_hi = R.hi
F = RC
X = C16; Y = C16 + 16
TR = B16; SG = B16 + 16; HH = B16 + 24; D2 = B16 + 28
sC = 24
sK10, sK01 = 26, 27
sM0, sNT, sOff, sCc = 28, 29, 31, 33

def dma_group(g, set_m0=True):
    base = EB + g * 16384
    so = g * 8192 if g < 4 else (g & 1) * 16384
    regs = vAC if g < 4 else (vBO if g < 6 else vDO)
    if set_m0:
        a(f"s_add_u32 m0, {sr(sM0)}, {base}")
    if so:
        a(f"s_mov_b32 {sr(sOff)}, {so}")
    elif set_m0:
        a("s_nop 0")
    for j in range(4):
        a(f"buffer_load_dwordx4 {vr(regs[j])}, s[20:23], {sr(sOff) if so else 0} offen offset:{1024*j} lds")

a.c("consumer: first weight loads")
a(f'''
s_setprio {PRIO_C}
s_sub_u32 {sr(sCc)}, s3, 4
s_mov_b32 s22, 131072
s_mov_b32 s23, 0x20000
v_lshrrev_b32 {vr(vT0)}, 5, v0
v_lshlrev_b32 {vr(vT0)}, 1, {vr(vT0)}
v_and_b32 {vr(vT1)}, 3, v0
v_xor_b32 {vr(vT1)}, {vr(vT0)}, {vr(vT1)}
s_lshl_b32 s34, {sr(sCc)}, 6
v_lshl_add_u32 {vr(vT1)}, {vr(vT1)}, 4, s34
v_lshrrev_b32 {vr(vT0)}, 2, v0
v_lshl_add_u32 {vr(vAC[0])}, {vr(vT0)}, 8, {vr(vT1)}
v_add_u32 {vr(vAC[1])}, {65536-1024}, {vr(vAC[0])}
v_add_u32 {vr(vAC[2])}, {4096-2048}, {vr(vAC[0])}
v_add_u32 {vr(vAC[3])}, {69632-3072}, {vr(vAC[0])}
s_lshl_b32 {sr(sM0)}, {sr(sCc)}, 12
s_add_u32 m0, {sr(sM0)}, {EB}
s_lshr_b32 s26, s2, 3
s_lshl_b32 s26, s26, 12
s_lshl_b32 s27, {sr(sCc)}, 10
s_add_u32 s26, s26, s27
v_lshl_add_u32 {vr(vT2)}, v0, 7, s26
s_mov_b64 exec, 0xff
s_waitcnt lgkmcnt(0)
''')
stamp(1)
a(f"global_load_dword {vr(TC)}, {vr(vT2)}, s[20:21]\ns_mov_b64 exec, -1")
dma_group(0, set_m0=False)
dma_group(1)
if TOUCH:
    a(f'''
    s_mul_i32 s26, s2, 81920
    s_mul_i32 s27, {sr(sCc)}, 27136
    s_add_u32 s26, s26, s27
    s_lshl_b32 s27, s2, 12
    s_load_dword s50, s[6:7], s26
    s_load_dword s51, s[18:19], s27
    s_load_dword s49, s[16:17], 0
    ''')
a("s_branch L_cons\nL_exit0:\ns_endpgm")

R = Regs(1)
pM = R.alloc(5, 1)
pT0 = R.alloc(); pT1 = R.alloc(); pT2 = R.alloc(); pT3 = R.alloc(); pCh = R.alloc(); pChS = R.alloc(); pChT = R.alloc()
pRb = R.alloc(); pTr = R.alloc(); pTrL = R.alloc(); pSr = R.alloc(); pSLr = R.alloc()
pW2 = R.alloc(); pB1 = R.alloc(); pJunk = R.alloc()
pFE = R.alloc(); pFA = R.alloc(); pFS = R.alloc(); pFM = R.alloc(); pOut = R.alloc()
pLE = R.alloc(); pLA = R.alloc(); pLS = R.alloc(); pLM = R.alloc()
pSig = R.alloc(); pRho = R.alloc(); pPos = R.alloc(); pRow = R.alloc(); pBt = R.alloc(); pEn = R.alloc()
pTw = R.alloc(); pTrb = R.alloc(); pMa = R.alloc()
pDO = [R.alloc() for _ in range(4)]
pWd = R.alloc(2, 2)
pEnt = R.alloc(20, 2); pOff = R.alloc(20, 2)
H = R.alloc(48, 4); H2 = R.alloc(32, 4); HL = R.alloc(8, 4)
HB = R.alloc(8, 4); TT = R.alloc(16, 4); PP = R.alloc(8, 4); TM = R.alloc(4, 4)
SB = R.alloc(24, 4); SBL = R.alloc(4, 4); O0 = R.alloc(4, 4); O1 = R.alloc(4, 4)
prod_hi = R.hi
sN, sB2, sInv, sHM, sPM, sLast, sDM = 30, 33, 34, 35, 50, 51, 32
sBal = 40
sCn = [None, 10, 11, 28, 29, 31]
gs = GSW[0] | GSW[1] << 4 | GSW[2] << 8 | GSW[3] << 12

ROLE[0] = "p"
a("L_producer:")
a(f'''
s_setprio 2
s_getpc_b64 s[24:25]
s_and_b32 s24, s24, 0xfffff000
s_lshr_b32 s26, s2, 3
s_lshl_b32 s27, s26, 9
s_lshl_b32 s29, s3, 7
s_add_u32 s27, s27, s29
v_mov_b32 {vr(pT0)}, s27
s_mov_b64 exec, 1
global_load_dword {vr(pJunk)}, {vr(pT0)}, s[24:25]
s_mov_b64 exec, -1
s_mul_i32 s24, s2, 640
v_lshl_add_u32 {vr(pT0)}, v0, 4, s24
v_and_b32 {vr(pCh)}, 15, v0
v_lshrrev_b32 {vr(pT2)}, 4, v0
v_lshlrev_b32 {vr(pT1)}, 2, {vr(pT2)}
s_mov_b32 s24, {gs:#x}
v_bfe_u32 {vr(pT1)}, s24, {vr(pT1)}, 4
v_xor_b32 {vr(pChS)}, {vr(pCh)}, {vr(pT1)}
v_lshlrev_b32 {vr(pChS)}, 4, {vr(pChS)}
v_lshl_add_u32 {vr(pRb)}, {vr(pT2)}, 8, {vr(pChS)}
s_lshl_b32 s25, s2, 12
s_lshl_b32 s27, s3, 10
s_add_u32 s25, s25, s27
v_add_u32 {vr(pT1)}, s25, {vr(pRb)}
v_lshlrev_b32 {vr(pT3)}, 2, v0
s_mul_i32 s26, s3, {RG}
s_add_u32 s26, s26, {TRAW}
s_mov_b32 m0, {MSK}
s_mov_b32 exec_hi, 0xff
s_waitcnt lgkmcnt(0)
''')
stamp(1)
a(f'''
global_load_lds_dwordx4 {vr(pT0)}, s[8:9]
s_mov_b32 m0, s26
s_mov_b32 exec_hi, -1
global_load_lds_dwordx4 {vr(pT1)}, s[4:5]
s_mov_b32 m0, {B1R}
global_load_dword {vr(pW2)}, {vr(pT3)}, s[14:15]
global_load_lds_dword {vr(pT3)}, s[12:13]
s_mul_i32 s25, s2, 81920
s_add_u32 s36, s6, s25
s_addc_u32 s37, s7, 0
s_mov_b32 s38, 81920
s_mov_b32 s39, 0x20000
s_setprio {PRIO_P0}
''')
a.c("zero areas and lane constants (i = lane>>4, chunk = lane&15)")
a(f'''
v_mov_b32 {vr(O0)}, 0
s_mul_i32 s25, s3, 384
s_add_u32 s25, s25, {SL}
v_add_u32 {vr(pT0)}, s25, {vr(pT3)}
ds_write_b32 {vr(pT0)}, {vr(O0)}
ds_write_b32 {vr(pT0)}, {vr(O0)} offset:128
v_lshlrev_b32 {vr(pT0)}, 2, {vr(pCh)}
v_add_u32 {vr(pT0)}, {ZER}, {vr(pT0)}
ds_write_b32 {vr(pT0)}, {vr(O0)}
s_branch L_touchB
L_backB:
v_add_u32 {vr(pTrb)}, s26, {vr(pRb)}
s_mul_i32 {sr(sHM)}, s3, {2*RG}
s_add_u32 {sr(sPM)}, {sr(sHM)}, {PR}
v_add_u32 {vr(pRb)}, {sr(sHM)}, {vr(pRb)}
v_lshlrev_b32 {vr(pChT)}, 4, {vr(pCh)}
v_add_u32 {vr(pChT)}, {TP}, {vr(pChT)}
s_lshl_b32 s25, s3, 10
v_lshl_add_u32 {vr(pTw)}, {vr(pT2)}, 8, {vr(pChT)}
v_add_u32 {vr(pTw)}, s25, {vr(pTw)}
v_lshrrev_b32 {vr(pT0)}, 1, {vr(pCh)}
v_and_b32 {vr(pT1)}, 1, v0
v_lshl_add_u32 {vr(pSig)}, {vr(pT1)}, 2, {vr(pT2)}
v_lshl_add_u32 {vr(pSig)}, {vr(pT0)}, 5, {vr(pSig)}
s_lshl_b32 s25, s3, 3
v_add_u32 {vr(pSig)}, s25, {vr(pSig)}
v_mul_u32_u24 {vr(pSr)}, {SS}, {vr(pCh)}
v_lshl_add_u32 {vr(pSr)}, {vr(pT2)}, 4, {vr(pSr)}
v_add_u32 {vr(pSr)}, {SM}, {vr(pSr)}
v_mul_u32_u24 {vr(pSLr)}, {SLS}, {vr(pCh)}
v_lshl_add_u32 {vr(pSLr)}, {vr(pT2)}, 4, {vr(pSLr)}
v_add_u32 {vr(pSLr)}, {SL}, {vr(pSLr)}
v_and_b32 {vr(pT1)}, 1, {vr(pT2)}
v_lshlrev_b32 {vr(pT1)}, 5, {vr(pT1)}
v_lshrrev_b32 {vr(pT0)}, 5, v0
v_lshl_add_u32 {vr(pT1)}, {vr(pT0)}, 4, {vr(pT1)}
s_lshl_b32 s25, s2, 12
s_lshl_b32 s26, s3, 6
s_add_u32 s25, s25, s26
v_lshl_add_u32 {vr(pOut)}, {vr(pCh)}, 8, s25
v_add_u32 {vr(pOut)}, {vr(pOut)}, {vr(pT1)}
v_and_b32 {vr(pT1)}, 12, v0
v_bfe_u32 {vr(pT0)}, s24, {vr(pT1)}, 4
s_lshl_b32 s25, s3, 2
v_xor_b32 {vr(pT0)}, s25, {vr(pT0)}
v_mul_u32_u24 {vr(pTr)}, {2*RG}, {vr(pT2)}
v_lshl_add_u32 {vr(pTr)}, {vr(pT1)}, 6, {vr(pTr)}
v_lshl_add_u32 {vr(pTr)}, {vr(pT0)}, 4, {vr(pTr)}
v_and_b32 {vr(pT1)}, 3, v0
v_lshl_add_u32 {vr(pTr)}, {vr(pT1)}, 3, {vr(pTr)}
s_lshl_b32 s25, s3, 10
s_add_u32 s25, s25, {PB}
v_lshl_add_u32 {vr(pFA)}, v0, 4, s25
s_lshl_b32 s25, s3, 7
s_add_u32 s25, s25, {SM}
v_lshl_add_u32 {vr(pFS)}, v0, 1, s25
v_lshlrev_b32 {vr(pT0)}, 1, v0
v_add_u32 {vr(pT0)}, {MSK}, {vr(pT0)}
v_mov_b32 {vr(pMa)}, {MSK}
s_mov_b32 s22, 131072
s_mov_b32 s23, 0x20000
s_lshl_b32 {sr(sDM)}, s3, 12
''')
a.c("Wd rows are permuted to match the dword-plane layout of the product tiles")
a(f'''
v_lshrrev_b32 {vr(pT1)}, 5, v0
v_bfe_u32 {vr(pT2)}, v0, 3, 2
v_lshlrev_b32 {vr(pT2)}, 3, {vr(pT2)}
v_lshl_add_u32 {vr(pT2)}, {vr(pT1)}, 5, {vr(pT2)}
v_bfe_u32 {vr(pRho)}, v0, 2, 1
v_add_u32 {vr(pT2)}, {vr(pT2)}, {vr(pRho)}
v_lshlrev_b32 {vr(pT1)}, 1, {vr(pT1)}
v_and_b32 {vr(pRho)}, 3, v0
v_xor_b32 {vr(pT1)}, {vr(pT1)}, {vr(pRho)}
s_lshl_b32 s25, s3, 6
v_lshl_add_u32 {vr(pT1)}, {vr(pT1)}, 4, s25
v_lshl_add_u32 {vr(pT2)}, {vr(pT2)}, 8, {vr(pT1)}
''')
for j in range(4):
    a(f"v_add_u32 {vr(pDO[j])}, {98304 - 512*j}, {vr(pT2)}")
for i in range(12, 20):
    a(f"v_mov_b32 {vr(pOff+i)}, {vr(pMa)}")
a("s_waitcnt vmcnt(3)")
stamp(2)
for g in range(5):
    a(f"ds_read_u16 {vr(pM+g)}, {vr(pT0)} offset:{128*g}")
for g in range(5):
    a(f"s_waitcnt lgkmcnt({4-g})\nv_cmp_ne_u32 {sr(sBal+2*g,2)}, 0, {vr(pM+g)}")
for g in range(5):
    a(f"s_bcnt1_i32_b64 {sr(sCn[g+1])}, {sr(sBal+2*g,2)}")
    if g:
        a(f"s_add_u32 {sr(sCn[g+1])}, {sr(sCn[g+1])}, {sr(sCn[g])}")
def select():
    a(f'''
    v_mov_b64 {vr(pWd,2)}, {sr(sBal,2)}
    v_mov_b32 {vr(pRho)}, {vr(pSig)}
    v_mov_b32 {vr(pPos)}, 0
    ''')
    for j in range(1, 5):
        a(f'''
        v_cmpx_le_u32 vcc, {sr(sCn[j])}, {vr(pSig)}
        v_mov_b64 {vr(pWd,2)}, {sr(sBal+2*j,2)}
        v_subrev_u32 {vr(pRho)}, {sr(sCn[j])}, {vr(pSig)}
        v_mov_b32 {vr(pPos)}, {j}
        ''')
    a(f'''
    s_mov_b64 exec, -1
    v_bcnt_u32_b32 {vr(pT0)}, {vr(pWd)}, 0
    v_sub_co_u32 {vr(pT0)}, vcc, {vr(pRho)}, {vr(pT0)}
    v_min_u32 {vr(pRho)}, {vr(pRho)}, {vr(pT0)}
    s_nop 0
    v_cndmask_b32 {vr(pWd)}, {vr(pWd+1)}, {vr(pWd)}, vcc
    v_addc_co_u32 {vr(pPos)}, vcc, {vr(pPos)}, {vr(pPos)}, vcc
    ''')
    for w in (16, 8, 4, 2):
        a(f'''
        v_and_b32 {vr(pT0)}, {(1 << w) - 1:#x}, {vr(pWd)}
        v_bcnt_u32_b32 {vr(pT0)}, {vr(pT0)}, 0
        v_sub_co_u32 {vr(pT0)}, vcc, {vr(pRho)}, {vr(pT0)}
        v_min_u32 {vr(pRho)}, {vr(pRho)}, {vr(pT0)}
        v_lshrrev_b32 {vr(pT1)}, {w}, {vr(pWd)}
        v_cndmask_b32 {vr(pWd)}, {vr(pT1)}, {vr(pWd)}, vcc
        v_addc_co_u32 {vr(pPos)}, vcc, {vr(pPos)}, {vr(pPos)}, vcc
        ''')
    a(f'''
    v_and_b32 {vr(pT0)}, 1, {vr(pWd)}
    v_cmp_lt_u32 vcc, {vr(pRho)}, {vr(pT0)}
    v_cmp_gt_u32 s[26:27], {sr(sCn[5])}, {vr(pSig)}
    v_mov_b32 {vr(pT1)}, 0x1ff
    v_addc_co_u32 {vr(pPos)}, vcc, {vr(pPos)}, {vr(pPos)}, vcc
    v_xor_b32 {vr(pPos)}, 63, {vr(pPos)}
    v_cndmask_b32 {vr(pPos)}, {vr(pT1)}, {vr(pPos)}, s[26:27]
    v_lshlrev_b32 {vr(pRow)}, 8, {vr(pPos)}
    v_lshl_add_u32 {vr(pT0)}, {vr(pPos)}, 1, {vr(pMa)}
    ds_read_u16 {vr(pEn)}, {vr(pT0)}
    ''')
def select2():
    a(f'''
    v_mul_u32_u24 {vr(pBt)}, 3277, {vr(pPos)}
    v_bfe_u32 {vr(pBt)}, {vr(pBt)}, 16, 4
    v_cndmask_b32 {vr(pEn)}, 0, {vr(pEn)}, s[26:27]
    v_lshlrev_b32 {vr(pEn)}, 16, {vr(pEn)}
    v_lshl_or_b32 {vr(pEn)}, {vr(pBt)}, 4, {vr(pEn)}
    v_lshlrev_b32 {vr(pBt)}, 8, {vr(pBt)}
    v_lshlrev_b32 {vr(pPos)}, 2, {vr(pSig)}
    v_add_u32 {vr(pPos)}, {TAB}, {vr(pPos)}
    ''')
def offs(k):
    for j in range(2):
        a(f"v_add_u32_dpp {vr(pOff+2*k+j)}, {vr(pRow)}, {vr(pChS)} row_newbcast:{(2*k+j) & 15} row_mask:0xf bank_mask:0xf")
def taddr(k):
    for j in range(2):
        a(f"v_add_u32_dpp {vr(pEnt+2*k+j)}, {vr(pBt)}, {vr(pChT)} row_newbcast:{(2*k+j) & 15} row_mask:0xf bank_mask:0xf")
def issue(k):
    for j in range(2):
        a(f'''
        s_add_u32 m0, {sr(sHM)}, {HS + (k % 6) * SLOT + j * RG}
        s_nop 0
        buffer_load_dwordx4 {vr(pOff+2*k+j)}, s[36:39], 0 offen {NT} lds
        ''')
def fin_pre(ent, dstS, dstM, stride):
    a(f'''
    v_bfe_u32 {vr(pT0)}, {vr(ent)}, 4, 4
    v_mul_u32_u24 {vr(pT0)}, {stride}, {vr(pT0)}
    v_add_u32 {vr(dstS)}, {vr(pT0)}, {vr(dstS)}
    v_and_b32 {vr(dstM)}, 0xffff0000, {vr(ent)}
    ''')
a.c("slot -> row: lane (i, x) resolves slot 32*(x>>1) + 8*wave + 4*(x&1) + i")
select()
for k in range(4):
    offs(k)
a("s_waitcnt vmcnt(0)")
stamp(23)
a(f'''
ds_read_b128 {vr(PP,4)}, {vr(pTrb)}
s_load_dword {sr(sB2)}, s[16:17], 0
s_add_u32 {sr(sN)}, {sr(sCn[5])}, 31
s_lshr_b32 {sr(sN)}, {sr(sN)}, 5
s_max_u32 {sr(sN)}, {sr(sN)}, 2
s_sub_u32 {sr(sLast)}, {sr(sN)}, 1
''')
a.c("table contents are formed in registers; the LDS writes wait until the weight stream has paused")
a(f'''
v_lshlrev_b32 {vr(TM)}, 16, {vr(pW2)}
v_and_b32 {vr(TM+1)}, 0xffff0000, {vr(pW2)}
v_and_b32 {vr(pT0)}, 0x7fffffff, {vr(TM)}
v_and_b32 {vr(pT1)}, 0x7fffffff, {vr(TM+1)}
v_max_u32 {vr(pT2)}, {vr(pT0)}, {vr(pT1)}
s_waitcnt lgkmcnt(0)
''')
select2()
for i, ctl in enumerate(("row_shr:1 row_mask:0xf", "row_shr:2 row_mask:0xf", "row_shr:4 row_mask:0xf", "row_shr:8 row_mask:0xf",
                         "row_bcast:15 row_mask:0xa", "row_bcast:31 row_mask:0xc")):
    a(f"v_max_u32_dpp {vr(pT2)}, {vr(pT2)}, {vr(pT2)} {ctl} bank_mask:0xf")
    taddr(i)
a(f'''
v_readlane_b32 s24, {vr(pT2)}, 63
s_lshr_b32 s24, s24, 23
s_max_u32 s24, s24, 15
s_min_u32 s24, s24, 254
s_sub_u32 s25, 268, s24
s_lshl_b32 s25, s25, 23
s_sub_u32 {sr(sInv)}, s24, 14
s_lshl_b32 {sr(sInv)}, {sr(sInv)}, 23
v_mul_f32 {vr(TM)}, s25, {vr(TM)}
v_mul_f32 {vr(TM+1)}, s25, {vr(TM+1)}
v_cvt_pk_f16_f32 {vr(TM)}, {vr(TM)}, {vr(TM+1)}
v_add_u32 {vr(pW2)}, {W2T}, {vr(pT3)}
v_mov_b32 {vr(pM)}, {NTW}
v_mov_b32 {vr(pM+1)}, {sr(sN)}
s_lshl_b32 {sr(sB2)}, {sr(sB2)}, 16
''')
for q in range(4):
    a(f"v_lshlrev_b32 {vr(TT+2*q)}, 16, {vr(PP+q)}\nv_and_b32 {vr(TT+2*q+1)}, 0xffff0000, {vr(PP+q)}")
for q in range(8):
    a(f"v_mul_f32 {vr(TT+q)}, {CSC:#x}, {vr(TT+q)}")
offs(4); offs(5)
VM = []
def vm_issue(tag):
    if tag in "67":
        g = int(tag)
        a(f"s_add_u32 m0, {sr(sDM)}, {EB + g * 16384}\ns_movk_i32 s24, {(g & 1) * 16384}")
        for j in range(4):
            a(f"buffer_load_dwordx4 {vr(pDO[j])}, s[20:23], s24 offen offset:{1024*j} lds")
        VM.extend([tag] * 4)
    else:
        issue(ord(tag) - ord("a"))
        VM.extend([tag] * 2)
def vm_wait(tags):
    idx = max(i for i, t in enumerate(VM) if t in tags)
    a(f"s_waitcnt vmcnt({len(VM) - 1 - idx})")
stamp(3)
a("s_barrier")
stamp(4)
npre = ORDER.index("b") + 1
for t in ORDER[:npre]:
    vm_issue(t)
vm_wait(ORDER[:ORDER.index("a")])
stamp(5)
a(f'''
ds_write_b32 {vr(pPos)}, {vr(pEn)}
ds_write_b32 {vr(pM)}, {vr(pM+1)}
ds_write_b128 {vr(pTw)}, {vr(TT,4)}
ds_write_b128 {vr(pTw)}, {vr(TT+4,4)} offset:4096
ds_write_b32 {vr(pW2)}, {vr(TM)}
s_cmp_gt_u32 {sr(sN)}, 6
s_cbranch_scc1 L_psel2
L_psel_back:
''')
a(f'''
s_lshl_b32 s24, s3, 8
s_add_u32 s24, s24, {TAB}
v_add_u32 {vr(pT0)}, s24, {vr(pT3)}
s_lshl_b32 s24, {sr(sLast)}, 7
s_add_u32 s24, s24, {TAB}
v_and_b32 {vr(pT1)}, 31, v0
v_lshl_add_u32 {vr(pT2)}, {vr(pT1)}, 2, s24
s_waitcnt lgkmcnt(0)
s_barrier
ds_read_b32 {vr(pFE)}, {vr(pT0)}
ds_read_b32 {vr(pLE)}, {vr(pT2)}
s_branch L_pmain
''')

a(".p2align 12\nL_touchB:\ns_branch L_backB\ns_nop 0\nL_pmain:")
def tread(k):
    for j in range(2):
        e = pEnt + 2 * k + j
        a(f"ds_read_b128 {vr(TT+8*j,4)}, {vr(e)}\nds_read_b128 {vr(TT+8*j+4,4)}, {vr(e)} offset:4096")
def produce(k, mid=None):
    for j in range(2):
        a(f"ds_read_b128 {vr(HB+4*j,4)}, {vr(pRb)} offset:{HS + (k % 6) * SLOT + j * RG}")
    if mid:
        mid()
    a(f"s_mov_b32 m0, {sr(sPM)}")
    for j in range(2):
        a(f"s_waitcnt lgkmcnt({1 if j == 0 else 4})")
        for q in range(4):
            t = TM + 2 * (q & 1); h = HB + 4 * j + q
            a(f'''
            v_lshlrev_b32 {vr(t)}, 16, {vr(h)}
            v_and_b32 {vr(t+1)}, 0xffff0000, {vr(h)}
            v_mul_f32 {vr(t)}, {vr(t)}, {vr(TT+8*j+2*q)}
            v_mul_f32 {vr(t+1)}, {vr(t+1)}, {vr(TT+8*j+2*q+1)}
            v_cvt_pk_bf16_f32 {vr(PP+4*j+q)}, {vr(t)}, {vr(t+1)}
            ''')
        for q in range(4):
            a(f"ds_write_addtid_b32 {vr(PP+4*j+q)} offset:{(k % 3) * SLOT + j * RG + q * 256}")
def trread(dst, base, slot):
    for mt in range(2):
        for jj in range(2):
            a(f"ds_read_b64_tr_b16 {vr(dst+4*mt+2*jj,2)}, {vr(base)} offset:{HS + slot * SLOT + jj * RG + mt * 32}")

tread(0)
for t in ORDER[npre:]:
    vm_issue(t)
a(f'''
s_lshl_b32 s24, {sr(sLast)}, 9
s_add_u32 s24, s24, {PB}
v_lshl_add_u32 {vr(pLA)}, {vr(pT1)}, 4, s24
v_lshlrev_b32 {vr(pLS)}, 1, {vr(pT1)}
v_add_u32 {vr(pLS)}, {SL}, {vr(pLS)}
s_cmp_ge_u32 {sr(sLast)}, 6
s_cselect_b32 s24, 6, 0
s_sub_u32 s24, {sr(sLast)}, s24
s_mul_i32 s24, s24, {SLOT}
v_add_u32 {vr(pTrL)}, s24, {vr(pTr)}
s_lshl_b32 s24, {sr(sLast)}, 5
s_lshl_b32 s25, s3, 6
s_sub_i32 s24, s24, s25
v_cmp_gt_i32 {sr(sBal,2)}, s24, v0
v_mov_b32 {vr(pMa)}, {vr(pFS)}
s_waitcnt lgkmcnt(4)
''')
fin_pre(pFE, pFS, pFM, SS)
fin_pre(pLE, pLS, pLM, SLS)
a(f"s_setprio {PRIO_P2}")
vm_wait("a")
stamp(6)
produce(0, mid=lambda: a("s_barrier"))
tread(1)
vm_wait("67b")
a("s_waitcnt lgkmcnt(4)")
stamp(7)
a("s_barrier")
def step(k):
    produce(k)
    if k == 1:
        vm_issue("e"); vm_issue("f")
    if k == 4:
        a(f"s_cmp_gt_u32 {sr(sN)}, 6\ns_cbranch_scc1 L_psave\nL_psave_back:")
    if k != 9:
        a(f"s_cmp_eq_u32 {sr(sN)}, {k+1}\ns_cbranch_scc1 L_pdone")
    if k == 5:
        a("s_branch L_pmore")
        return
    if k == 9:
        return
    step_tail(k)
def step_tail(k):
    tread(k + 1)
    vm_wait(chr(ord("a") + k + 1))
    a("s_waitcnt lgkmcnt(4)")
    if k < 5:
        stamp(8 + 2 * (k - 1))
    a("s_barrier")
    if k < 5:
        stamp(9 + 2 * (k - 1))
    if k == 1:
        a(f"s_setprio {PRIO_P3}")
for k in range(1, 6):
    step(k)
a("L_pdone:")
a("s_waitcnt vmcnt(0) lgkmcnt(0)")
stamp(17)
a("s_barrier")
stamp(18)
a.c("zero the score matrix, fetch the transposed history fragments")
a(f'''
s_setprio 0
s_mul_i32 s24, s3, 2816
s_add_u32 m0, s24, {SM - 49152}
v_mov_b32 {vr(O0)}, 0
''')
for i in range(11):
    a(f"ds_write_addtid_b32 {vr(O0)} offset:{49152 + 256*i}")
trread(HL, pTrL, 0)
for k in range(6):
    if k % 3 == 0:
        a("s_waitcnt lgkmcnt(3)")
    trread(H + 8 * k, pTr, k)
def fin(src, off, msk, dst, doff, ex):
    a(f'''
    v_add_f32 {vr(src)}, {vr(src)}, {vr(src+1)}
    v_add_f32 {vr(src+2)}, {vr(src+2)}, {vr(src+3)}
    v_add_f32 {vr(src)}, {vr(src)}, {vr(src+2)}
    v_fma_f32 {vr(src)}, {vr(src)}, {sr(sInv)}, {vr(pB1)}
    v_mul_f32 {vr(src)}, {vr(src)}, {vr(msk)}
    v_cvt_pk_bf16_f32 {vr(src)}, {vr(src)}, {vr(src)}
    ''')
    if ex:
        a(f"s_mov_b64 exec, {ex}")
    a(f"ds_write_b16 {vr(dst)}, {vr(src)} offset:{doff}")
    if ex:
        a("s_mov_b64 exec, -1")
a(f"v_mov_b32 {vr(pB1)}, {sr(sB2)}\ns_setprio {PRIO_PT}\ns_waitcnt lgkmcnt(0)")
a("s_barrier")
stamp(19)
a(f"ds_read_b128 {vr(TM,4)}, {vr(pFA)}\ns_waitcnt lgkmcnt(0)")
fin(TM, 0, pFM, pFS, 0, sr(sBal, 2))
a(f"s_cmp_gt_u32 {sr(sN)}, 6\ns_cbranch_scc1 L_pfin2\nL_pfin_back:")
a("s_waitcnt lgkmcnt(0)\ns_barrier")
stamp(20)
a(f"ds_read_b128 {vr(TM,4)}, {vr(pLA)}")
for k in range(6):
    a(f"ds_read_b128 {vr(SB+4*k,4)}, {vr(pSr)} offset:{64*k}")
a("s_waitcnt lgkmcnt(6)")
fin(TM, 0, pLM, pLS, 0, None)
a(f"ds_read_b128 {vr(SBL,4)}, {vr(pSLr)}")
a(f"s_cmp_gt_u32 {sr(sN)}, 6\ns_cbranch_scc1 L_psum2")
a("s_waitcnt lgkmcnt(2)")
for k in range(6):
    mf16(O0, H + 8 * k, SB + 4 * k, "0" if k == 0 else O0)
    mf16(O1, H + 8 * k + 4, SB + 4 * k, "0" if k == 0 else O1)
a("L_psum_back:\ns_waitcnt lgkmcnt(0)")
mf16(O0, HL, SBL, O0)
mf16(O1, HL + 4, SBL, O1)
a(f'''
s_nop 6
v_cvt_pk_bf16_f32 {vr(PP)}, {vr(O0)}, {vr(O0+1)}
v_cvt_pk_bf16_f32 {vr(PP+1)}, {vr(O0+2)}, {vr(O0+3)}
v_cvt_pk_bf16_f32 {vr(PP+2)}, {vr(O1)}, {vr(O1+1)}
v_cvt_pk_bf16_f32 {vr(PP+3)}, {vr(O1+2)}, {vr(O1+3)}
s_nop 0
v_permlane16_swap_b32 {vr(PP)}, {vr(PP+2)}
v_permlane16_swap_b32 {vr(PP+1)}, {vr(PP+3)}
global_store_dwordx4 {vr(pOut)}, {vr(PP,4)}, s[18:19]
''')
stamp(21)
if STAMP:
    a("s_waitcnt vmcnt(0)")
stamp(22)
stamp_out(pT0, pT1)
a("s_endpgm")

ROLE[0] = "c"
a(".p2align 12\nL_cons:\ns_branch L_touchD\nL_backD:")
a(f'''
s_mov_b32 {sr(sC)}, {CSC:#x}
s_mov_b32 {sr(sC+1)}, {CSC:#x}
s_mov_b32 {sr(sK10)}, 0x00003f80
s_mov_b32 {sr(sK01)}, 0x3f800000
''')
for j in range(4):
    a(f"v_add_u32 {vr(vBO[j])}, {32768 + 3072*j}, {vr(vAC[0])}")
a(f"v_lshrrev_b32 {vr(vT0)}, 5, v0")
a.c("transpose-read addresses")
a(f'''
v_bfe_u32 {vr(vT1)}, v0, 2, 2
v_and_b32 {vr(vT2)}, 3, v0
v_lshlrev_b32 {vr(vT2)}, 3, {vr(vT2)}
v_lshl_add_u32 {vr(vT1)}, {vr(vT1)}, 6, {vr(vT2)}
v_add_u32 {vr(vT1)}, {sr(sM0)}, {vr(vT1)}
v_bfe_u32 {vr(vT2)}, v0, 4, 1
v_xor_b32 {vr(vT3)}, {vr(vT2)}, {vr(vT0)}
v_lshl_add_u32 {vr(vTE)}, {vr(vT3)}, 5, {vr(vT1)}
v_lshl_add_u32 {vr(vTE)}, {vr(vT0)}, 9, {vr(vTE)}
v_add_u32 {vr(vTPs)}, {PST}, {vr(vTE)}
v_add_u32 {vr(vTE)}, {EB}, {vr(vTE)}
v_mul_u32_u24 {vr(vT3)}, {512+32}, {vr(vT2)}
v_add_u32 {vr(vT1)}, {vr(vT1)}, {vr(vT3)}
v_lshl_add_u32 {vr(vC16[0])}, {vr(vT0)}, 11, {vr(vT1)}
v_xor_b32 {vr(vC16[1])}, 32, {vr(vC16[0])}
v_lshl_add_u32 {vr(vB16[0])}, {vr(vT0)}, 10, {vr(vT1)}
v_xor_b32 {vr(vB16[1])}, 32, {vr(vB16[0])}
v_add_u32 {vr(vC16[0])}, {EB}, {vr(vC16[0])}
v_add_u32 {vr(vC16[1])}, {EB}, {vr(vC16[1])}
v_add_u32 {vr(vB16[0])}, {PST}, {vr(vB16[0])}
v_add_u32 {vr(vB16[1])}, {PST}, {vr(vB16[1])}
''')
a.c("tile fragment addresses")
a(f'''
v_bfe_u32 {vr(vT1)}, v0, 2, 3
v_mul_u32_u24 {vr(vT1)}, {RG}, {vr(vT1)}
v_lshl_add_u32 {vr(vT1)}, {vr(vT0)}, 4, {vr(vT1)}
v_and_b32 {vr(vT2)}, 3, v0
v_lshl_add_u32 {vr(vPRA)}, {vr(vT2)}, 6, {vr(vT1)}
v_add_u32 {vr(vPRA)}, {PR}, {vr(vPRA)}
v_lshl_add_u32 {vr(vT1)}, {vr(vT2)}, 8, {vr(vT1)}
v_lshlrev_b32 {vr(vT2)}, 2, {vr(vT2)}
s_mov_b32 s34, {gs:#x}
v_bfe_u32 {vr(vT2)}, s34, {vr(vT2)}, 4
''')
for u in range(4):
    a(f"v_xor_b32 {vr(vT3)}, {4*u}, {vr(vT2)}\nv_lshl_add_u32 {vr(vHA[u])}, {vr(vT3)}, 4, {vr(vT1)}")
a(f'''
v_bfe_u32 {vr(vT1)}, v0, 2, 2
v_mul_u32_u24 {vr(vT1)}, {RG}, {vr(vT1)}
v_and_b32 {vr(vT3)}, 3, v0
v_lshl_add_u32 {vr(vT1)}, {vr(vT3)}, 8, {vr(vT1)}
v_and_b32 {vr(vT3)}, 48, v0
v_add_u32 {vr(vT1)}, {vr(vT1)}, {vr(vT3)}
v_add_u32 {vr(vT1)}, {TRAW}, {vr(vT1)}
''')
for u in range(4):
    a(f"v_xor_b32 {vr(vT3)}, {4*u}, {vr(vT2)}\nv_lshl_add_u32 {vr(TF+4*u)}, {vr(vT3)}, 4, {vr(vT1)}")
a(f'''
s_add_u32 s34, {sr(sM0)}, {PST + TOF}
v_lshl_add_u32 {vr(vTw)}, v0, 4, s34
v_lshl_add_u32 {vr(vTC)}, {vr(vT0)}, 8, s34
v_and_b32 {vr(vT1)}, 31, v0
s_lshl_b32 s34, {sr(sCc)}, 2
s_add_u32 s34, s34, {PB}
v_lshl_add_u32 {vr(vPA)}, {vr(vT1)}, 4, s34
v_lshlrev_b32 {vr(TA+9)}, 2, {vr(vT1)}
v_add_u32 {vr(TA+9)}, {TAB}, {vr(TA+9)}
v_lshrrev_b32 {vr(vT2)}, 4, v0
s_lshl_b32 s34, {sr(sCc)}, 6
s_add_u32 s34, s34, {B1R}
v_lshl_add_u32 {vr(vT2)}, {vr(vT2)}, 3, s34
s_movk_i32 s35, 0xf0
s_lshl_b32 s34, {sr(sCc)}, 6
s_add_u32 s34, s34, {W2T}
v_lshl_add_u32 {vr(W2A)}, {vr(vT0)}, 3, s34
s_mov_b32 exec_lo, 0x0f0ff0f0
s_mov_b32 exec_hi, 0x0f0ff0f0
v_mov_b32 {vr(W2A)}, {ZER}
s_mov_b64 exec, -1
v_mov_b32 {vr(vT0)}, {NTW}
''')

def tr32(g):
    base, off = (vTE, g * 16384) if g < 4 else (vTPs, (g - 4) * 16384)
    for j in range(4):
        if g < 4:
            dst = (RC if j & 1 else WAC) + 4 * (2 * g + (j >> 1))
        else:
            dst = WD + 4 * (4 * (g - 6) + j)
        for jj in range(2):
            yield f"ds_read_b64_tr_b16 {vr(dst+2*jj,2)}, {vr(base)} offset:{off + 1024*j + 256*jj}"
def tr16c(g):
    for mt in range(2):
        for jj in range(2):
            yield f"ds_read_b64_tr_b16 {vr(C16+8*g+4*mt+2*jj,2)}, {vr(vC16[mt])} offset:{g*16384 + 1024 + 256*jj}"
def tr16b(g):
    for S in range(2):
        for mt in range(2):
            for jj in range(2):
                yield f"ds_read_b64_tr_b16 {vr(B16+8*(2*(g-4)+S)+4*mt+2*jj,2)}, {vr(vB16[mt])} offset:{(g-4)*16384 + 2048*S + 256*jj}"
def emit(it):
    for x in it:
        a(x)
def combine(s):
    ra = WAC + 4 * s; rc = RC + 4 * s
    for q in range(4):
        a(f"v_lshlrev_b32 {vr(EE+2*q)}, 16, {vr(ra+q)}\nv_and_b32 {vr(EE+2*q+1)}, 0xffff0000, {vr(ra+q)}")
    for q in range(4):
        a(f"v_dot2_f32_bf16 {vr(EE+2*q)}, {vr(rc+q)}, {sr(sK10)}, {vr(EE+2*q)}")
        a(f"v_dot2_f32_bf16 {vr(EE+2*q+1)}, {vr(rc+q)}, {sr(sK01)}, {vr(EE+2*q+1)}")
    for q in range(4):
        a(f"v_pk_mul_f32 {vr(EE+2*q,2)}, {vr(EE+2*q,2)}, {sr(sC,2)}")
    for q in range(4):
        a(f"v_cvt_pk_bf16_f32 {vr(ra+q)}, {vr(EE+2*q)}, {vr(EE+2*q+1)}")

def capture(f):
    n = len(a.lines)
    f()
    out = a.lines[n:]
    del a.lines[n:]
    return out
def comb(i, g=None, dma=None):
    def work():
        for x in CPLAN[i]:
            if g is not None and x >= 2 * g:
                a(f"s_waitcnt lgkmcnt({8 if x == 2 * g else 4})")
            combine(x)
    v = capture(work)
    d = capture(lambda: dma_group(dma)) if dma is not None else []
    head, d = d[:3], d[3:]
    a.lines.extend(head)
    if v and "waitcnt" in v[0]:
        a.lines.extend(d[:1]); d = d[1:]
    for n, ln in enumerate(v):
        a.lines.append(ln)
        if d and n % 8 == 7:
            a.lines.append(d.pop(0))
    a.lines.extend(d)
stamp(21)
dma_group(2)
a("s_waitcnt vmcnt(8)")
stamp(2)
emit(tr32(0)); emit(tr16c(0))
comb(0, 0, 3)
a("s_waitcnt vmcnt(8) lgkmcnt(0)")
stamp(3)
emit(tr32(1)); emit(tr16c(1))
comb(1, 1, 4)
a("s_waitcnt vmcnt(8) lgkmcnt(0)")
stamp(4)
emit(tr32(2)); emit(tr16c(2))
v = capture(lambda: comb(2, 2, 5))
last = max(i for i, ln in enumerate(v) if "buffer_load" in ln)
a.lines.extend(v[:last+1])
stamp(6)
a("s_barrier")
stamp(7)
a.lines.extend(v[last+1:])
a("s_waitcnt vmcnt(8) lgkmcnt(0)")
stamp(5)
emit(tr32(3)); emit(tr16c(3))
comb(3, 3)
a("s_waitcnt lgkmcnt(0)")
for k in range(4):
    a(f"ds_read_b128 {vr(TF+4*k,4)}, {vr(TF+4*k)}")
a(f"ds_read_b64 {vr(TB+2,2)}, {vr(vT2)}\nds_read_b64 {vr(TB+6,2)}, {vr(vT2)} offset:32")
a("s_waitcnt vmcnt(4)")
stamp(8)
emit(tr16b(4))
comb(4)
a("s_waitcnt lgkmcnt(8)")
ub = []
for mt in range(2):
    b = TB + 4 * mt
    ub += [f"v_lshlrev_b32 {vr(b)}, 16, {vr(b+2)}", f"v_and_b32 {vr(b+1)}, 0xffff0000, {vr(b+2)}",
           f"v_lshlrev_b32 {vr(b+2)}, 16, {vr(b+3)}", f"v_and_b32 {vr(b+3)}, 0xffff0000, {vr(b+3)}"]
for S in range(4):
    for mt in range(2):
        mf16(TC + 4 * mt, C16 + 8 * S + 4 * mt, TF + 4 * S, "0" if S == 0 else TC + 4 * mt)
        a(ub.pop(0))
a("s_waitcnt vmcnt(0) lgkmcnt(0)")
stamp(9)
emit(tr16b(5))
for S in range(4):
    if S >= 2:
        a(f"s_waitcnt lgkmcnt({4 * (3 - S)})")
    for mt in range(2):
        mf16(TB + 4 * mt, B16 + 8 * S + 4 * mt, TF + 4 * S, TB + 4 * mt)
comb(5)
if not CPLAN[5]:
    a("s_nop 7")
for q in range(4):
    a(f"v_pk_add_f32 {vr(TB+2*q,2)}, {vr(TB+2*q,2)}, {vr(TC+2*q,2)} neg_lo:[0,1] neg_hi:[0,1]")
for q in range(4):
    a(f"v_pk_mul_f32 {vr(TB+2*q,2)}, {vr(TB+2*q,2)}, {sr(sC,2)}")
stamp(10)
a(f"ds_write_b128 {vr(vTw)}, {vr(TB,4)}\nds_write_b128 {vr(vTw)}, {vr(TB+4,4)} offset:1024")
comb(6)
a("s_barrier")
stamp(23)
for k in range(4):
    a(f"ds_read2_b32 {vr(TA+2*k,2)}, {vr(TA+9)} offset0:{64*k} offset1:{64*k+32}")
a(f'''
ds_read_b32 {vr(vT1)}, {vr(vT0)}
ds_read_b32 {vr(TA+8)}, {vr(TA+9)} offset:1024
ds_read_b32 {vr(TA+9)}, {vr(TA+9)} offset:1152
''')
for k in (3, 2, 1, 0):
    a(f"ds_read_b64 {vr(W2A+2*k,2)}, {vr(W2A)} offset:{16*k}")
def ta(k):
    a(f"v_and_or_b32 {vr(TA+k)}, {vr(TA+k)}, s35, {vr(vTC)}")
a("s_waitcnt lgkmcnt(10)")
ta(0)
for q in range(4):
    a(f"ds_read_b128 {vr(TR+4*q,4)}, {vr(TA)} offset:{512*q}")
a("s_waitcnt lgkmcnt(8)")
for k in range(1, 10):
    ta(k)
a(f"v_readfirstlane_b32 {sr(sNT)}, {vr(vT1)}")
a("s_waitcnt lgkmcnt(4)")
EARLY = [int(t) for t in ORDER[:ORDER.index("a")]]
for g in EARLY:
    emit(tr32(g))
    a("s_waitcnt lgkmcnt(7)")
comb(7)
stamp(11)
a("s_waitcnt lgkmcnt(0)\ns_barrier")
stamp(12)

def frag(k, s):
    d = vr(F + 4 * (s & 7), 4)
    if s < 8:
        return f"ds_read_b128 {d}, {vr(vHA[s >> 1])} offset:{HS + (k % 6) * SLOT + (s & 1) * 32}"
    u = s - 8
    return f"ds_read_b128 {d}, {vr(vPRA)} offset:{(k % 3) * SLOT + (u & 3) * 256 + (u >> 2) * 32}"

def sig_ops():
    ops = []
    e = lambda j: EE + (j & 7)
    h = lambda p: HH + (p & 3)
    for t in range(8 + 3):
        p = t
        if p < 8:
            ops.append((f"v_exp_f32 {vr(e(2*p))}, {vr(Y+2*p)}", 8, "E"))
        p = t - 1
        if 0 <= p < 8:
            ops.append((f"v_cvt_pk_f16_f32 {vr(h(p))}, {vr(e(2*p))}, {vr(e(2*p+1))}", 4, "C"))
        p = t - 2
        if 0 <= p < 8:
            ops.append((f"v_rcp_f16 {vr(SG+p)}, {vr(h(p))}", 8, "RL"))
        p = t
        if p < 8:
            ops.append((f"v_exp_f32 {vr(e(2*p+1))}, {vr(Y+2*p+1)}", 8, "E"))
        p = t - 1
        if 0 <= p < 8:
            ops.append((f"v_pk_add_f16 {vr(h(p))}, {vr(h(p))}, 1.0 op_sel_hi:[1,0]", 4, "A"))
        p = t - 2
        if 0 <= p < 8:
            ops.append((f"v_rcp_f16_sdwa {vr(SG+p)}, {vr(h(p))} dst_sel:WORD_1 dst_unused:UNUSED_PRESERVE src0_sel:WORD_1", 8, f"RH{p}"))
    return ops
L0 = f"v_mfma_f32_16x16x32_f16 {vr(D2,4)}, {vr(W2A,4)}, {vr(SG,4)}, 0"
L1 = f"v_mfma_f32_16x16x32_f16 {vr(D2,4)}, {vr(W2A+4,4)}, {vr(SG+4,4)}, {vr(D2,4)}"

def split_sig():
    ops = sig_ops()
    lastE = max(i for i, o in enumerate(ops) if o[2] == "E")
    head, tail = ops[:lastE+1], ops[lastE+1:]
    slots = {s: [] for s in range(16)}
    tot = sum(o[1] for o in head); acc = 0
    for o in head:
        slots[2 + min(12, int((acc + o[1] / 2) * 13 / tot))].append(o); acc += o[1]
    tot = sum(o[1] for o in tail); acc = 0
    for o in tail:
        slots[[15, 0, 1][min(2, int((acc + o[1] / 2) * 3 / tot))]].append(o); acc += o[1]
    return slots

class Q:
    def __init__(self): self.q = []
    def lds(self, text, tag):
        a(text); self.q.append(tag)
        assert len(self.q) <= 15, self.q
    def need(self, tags):
        idx = [i for i, t in enumerate(self.q) if t in tags]
        if idx:
            a(f"s_waitcnt lgkmcnt({len(self.q) - 1 - max(idx)})")
            del self.q[:max(idx)+1]
            return True
        return False
q = Q()
last_valu = [None]
def valu(o):
    if o[2].startswith("RH") and last_valu[0] is not None and last_valu[0][2] == "RL" and a.lines[-1].strip() == last_valu[0][0]:
        a("s_nop 0")
    a(o[0]); last_valu[0] = o

def body(k):
    slots = split_sig()
    pendL0 = None
    dd = sum([list(tr32(g)) for g in (6, 7) if g not in EARLY], []) if k == 0 else []
    nd = len(dd)
    for s in range(16):
        A = (WAC + 4 * s) if s < 8 else (WD + 4 * (s - 8))
        mf32(Y if s == 15 else X, A, F + 4 * (s & 7), TR if s == 0 else X)
        tags = {f"f{(s+1) & 15}", f"d{s+1}"}
        if s == 15:
            tags |= {"T0", "T1", "T2", "T3"}
        q.need(tags)
        n = s + NF
        if k == 0:
            if s == RP0S:
                q.need({"f7"})
                a("s_barrier")
                stamp(13)
                for m in range(8, min(RP0S + NF, RP0S + 7) + 1):
                    if dd and nd == 16 and m < 11:
                        for _ in range(2):
                            q.lds(dd.pop(0), f"d{16 - (len(dd) + 2) // 2}")
                    q.lds(frag(0, m), f"f{m}")
            elif s > RP0S and dd:
                for _ in range(2):
                    q.lds(dd.pop(0), f"d{16 - (len(dd) + 2) // 2}")
        elif n == 8:
            a("s_barrier")
        if k > 0 or s > RP0S:
            q.lds(frag(k + (n >> 4), n & 15), f"f{n & 15}")
        if k == 0 and s == 14:
            a("s_branch L_cmain\n.p2align 12\nL_touchD:\ns_branch L_backD\ns_nop 0\nL_cmain:")
        tr_slots = (3, 4, 6, 8) if k else (10, 11, 12, 13)
        if s in tr_slots and k < 9:
            t = tr_slots.index(s)
            q.lds(f"ds_read_b128 {vr(TR+4*t,4)}, {vr(TA+k+1)} offset:{512*t}", f"T{t}")
        if k >= 2 and s == 5:
            q.lds(f"ds_write_b32 {vr(vPA)}, {vr(D2)} offset:{512*(k-2)}", "pw")
        if k >= 1:
            todo = slots[s] if (k >= 2 or s >= 2) else []
            extra = L1 if (k >= 2 and s == 2) else (L0 if pendL0 == s else None)
            for i, o in enumerate(todo):
                valu(o)
                if o[2] == "RH3":
                    pendL0 = s + 1
                if extra and i == 1:
                    a(extra); extra = None
            if extra:
                a(extra)
        if k == 1 and s == 1:
            a("s_nop 3")

assert NF <= 6
for s in range(8):
    q.lds(frag(0, s), f"f{s}")
q.need({"f0"})
body(0)
stamp(14)
for k in range(1, 6):
    body(k)
    if k < 5:
        stamp(14 + k)
    if k < 5:
        a(f"s_cmp_eq_u32 {sr(sNT)}, {k+1}\ns_cbranch_scc1 L_drain")
    else:
        a(f"s_cmp_gt_u32 {sr(sNT)}, 6\ns_cbranch_scc1 L_cmore")
qsave = list(q.q)
a("L_drain:")
stamp(19)
slots = split_sig()
for s in (0, 1):
    for o in slots[s]:
        valu(o)
a(f'''
s_lshl_b32 {sr(sNT)}, {sr(sNT)}, 9
s_sub_u32 {sr(sNT)}, {sr(sNT)}, 1024
{L1}
v_add_u32 {vr(vPA)}, {sr(sNT)}, {vr(vPA)}
s_nop 1
''')
ops = sig_ops()
for i, o in enumerate(ops):
    valu(o)
    if i == 5:
        a(f"ds_write_b32 {vr(vPA)}, {vr(D2)}")
    if i == 14:
        a("s_waitcnt lgkmcnt(0)\ns_barrier")
    if i >= 2 and ops[i-2][2] == "RH3":
        a(L0)
a(f'''
s_nop 1
{L1}
s_nop 7
ds_write_b32 {vr(vPA)}, {vr(D2)} offset:512
s_waitcnt lgkmcnt(0)
s_barrier
''')
stamp(20)
stamp_out(vT0, vT1)
a("s_endpgm")

a("L_cmore:")
q.q = list(qsave)
for k in range(6, 10):
    body(k)
    if k < 9:
        a(f"s_cmp_eq_u32 {sr(sNT)}, {k+1}\ns_cbranch_scc1 L_drain")
a("s_branch L_drain")

a("L_psave:")
a("s_waitcnt lgkmcnt(0)")
for k in range(4):
    if k == 3:
        a("s_waitcnt lgkmcnt(0)")
    trread(H2 + 8 * k, pTr, k)
a("s_waitcnt lgkmcnt(0)\ns_branch L_psave_back")
a("L_pmore:")
for t in "ghij":
    vm_issue(t)
step_tail(5)
for k in range(6, 10):
    step(k)
a("s_branch L_pdone")
a("L_psel2:")
for k in (6, 7):
    offs(k); taddr(k)
a(f"v_add_u32 {vr(pSig)}, 256, {vr(pSig)}\ns_waitcnt lgkmcnt(0)")
select()
a("s_waitcnt lgkmcnt(0)")
select2()
for k in (8, 9):
    offs(k); taddr(k)
a(f'''
s_mov_b32 exec_lo, 0x000f000f
s_mov_b32 exec_hi, 0x000f000f
ds_write_b32 {vr(pPos)}, {vr(pEn)}
s_mov_b64 exec, -1
s_branch L_psel_back
''')
a("L_pfin2:")
a(f'''
s_cmp_lg_u32 s3, 0
s_cbranch_scc1 L_pfin_back
v_add_u32 {vr(pT0)}, {TAB + 1024}, {vr(pT3)}
ds_read_b32 {vr(pFE)}, {vr(pT0)}
ds_read_b128 {vr(TM,4)}, {vr(pFA)} offset:4096
s_lshl_b32 s24, {sr(sLast)}, 5
s_sub_i32 s24, s24, 256
v_cmp_gt_i32 {sr(sBal,2)}, s24, v0
s_waitcnt lgkmcnt(0)
''')
fin_pre(pFE, pMa, pFM, SS)
fin(TM, 0, pFM, pMa, 512, sr(sBal, 2))
a("s_branch L_pfin_back")
a("L_psum2:\ns_waitcnt lgkmcnt(0)")
for k in range(6):
    src = (H2 if k < 4 else H) + 8 * k
    mf16(O0, src, SB + 4 * k, "0" if k == 0 else O0)
    mf16(O1, src + 4, SB + 4 * k, "0" if k == 0 else O1)
for k in range(4):
    a(f"ds_read_b128 {vr(SB+4*k,4)}, {vr(pSr)} offset:{64*(k+6)}")
a("s_waitcnt lgkmcnt(0)")
for k in range(4):
    mf16(O0, H + 8 * k, SB + 4 * k, O0)
    mf16(O1, H + 8 * k + 4, SB + 4 * k, O1)
a("s_branch L_psum_back")

nv = (max(cons_hi, prod_hi) + 7) // 8 * 8
a(f'''
.section .rodata,"a"
.p2align 6
.amdhsa_kernel {NAME}_kernel
.amdhsa_next_free_vgpr {nv}
.amdhsa_next_free_sgpr 102
.amdhsa_accum_offset {nv}
.amdhsa_group_segment_fixed_size 0
.amdhsa_kernarg_size 80
.amdhsa_user_sgpr_count 2
.amdhsa_user_sgpr_kernarg_segment_ptr 1
.amdhsa_system_sgpr_workgroup_id_x 1
.end_amdhsa_kernel
''')
out = [x for x in ARGS if not x.startswith("--")]
open(out[0], "w").write(a.text())
print("vgprs consumer", cons_hi, "producer", prod_hi, "lds end", END, file=sys.stderr)
```

```python
import sys, subprocess
def build(opts, name, kind):
    subprocess.run(["python3", "gen13.py"] + opts.split() + [f"k/{name}.s"], check=True, capture_output=True)
    s = open(f"k/{name}.s").read()
    s = s.replace("recsys_kernel:\n", "recsys_kernel:\n    s_memrealtime s[70:71]\n", 1)
    i = s.index("s[18:19] sc1\n    s_endpgm\n")
    if kind == "tail":
        s = s.replace("L_pdone2:\n", "L_pdone2:\n    s_memrealtime s[72:73]\n", 1)
        expr = "    s_memrealtime s[74:75]\n    s_waitcnt lgkmcnt(0)\n    s_sub_u32 s78, s74, s72\n"
    elif kind == "skew":
        expr = ("    s_load_dwordx2 s[80:81], s[0:1], 64\n    s_waitcnt lgkmcnt(0)\n    s_mov_b64 exec, 1\n    v_mov_b32 v1, 0\n    s_not_b32 s79, s70\n    v_mov_b32 v2, s79\n"
                "    global_atomic_umax v1, v2, s[80:81] sc1\n    s_waitcnt vmcnt(0)\n"
                "L_cal0:\n    s_memrealtime s[76:77]\n    s_waitcnt lgkmcnt(0)\n    s_sub_u32 s76, s76, s70\n    s_cmp_lt_u32 s76, 2000\n    s_cbranch_scc1 L_cal0\n"
                "    global_atomic_umax v3, v1, v2, s[80:81] sc0 sc1\n    s_waitcnt vmcnt(0)\n    v_readfirstlane_b32 s78, v3\n    s_sub_u32 s78, s78, s79\n")
    else:
        expr = "    s_mov_b32 s78, 0\n"
    s = s.replace("s[18:19] sc1\n    s_endpgm\n", "s[18:19] sc1\n    s_waitcnt vmcnt(0) lgkmcnt(0)\n" + expr +
        "    s_lshl_b32 s78, s78, 4\n    s_min_u32 s78, s78, 20000\n    s_add_u32 s78, s78, 3000\n"
        "L_cal:\n    s_memrealtime s[76:77]\n    s_waitcnt lgkmcnt(0)\n    s_sub_u32 s76, s76, s70\n    s_cmp_lt_u32 s76, s78\n    s_cbranch_scc1 L_cal\n    s_endpgm\n")
    open(f"k/{name}.s", "w").write(s)
build("", "c0", "none")
build("", "c1", "skew")
build("--order=01a2b3/c/d/e/f --nt=", "c2", "tail")
build("", "c3", "tail")
build("--order=01ab23/c/def//", "c4", "tail")
build("--order=01abc23//de/f/", "c5", "tail")
```
